```python
import torch

def _softmax(x, axis=-1):
    return torch.softmax(x, dim=axis)
def _gelu(x):
    return torch.nn.functional.gelu(x, approximate="tanh")
def _silu(x):
    return torch.nn.functional.silu(x)
def _sigmoid(x):
    return torch.sigmoid(x)
def _layernorm(x, axis=-1, eps=1e-5):
    m = x.mean(dim=axis, keepdim=True)
    v = x.var(dim=axis, keepdim=True, unbiased=False)
    return (x - m) / torch.sqrt(v + eps)
def _scatter_add(tgt, idx, src, axis=0):
    return tgt.clone().index_add_(axis, idx, src)
def _segment_sum(src, seg, n):
    out = torch.zeros((n,) + src.shape[1:], dtype=src.dtype)
    return out.index_add_(0, seg, src)
def _pad(x, pw):
    flat = tuple(v for pair in reversed(pw) for v in pair)
    return torch.nn.functional.pad(x, flat)

kernel_name = 'standalone__gqa_softmax__near_ridge'

def setup_inputs():

    _w = (lambda a: (lambda t: t.to(torch.bfloat16) if t.is_floating_point() else t)(torch.as_tensor(a)))
    B, Hq, Hkv, Sq, Sk, D = 8, 32, 8, 256, 512, 128
    return {
        "q": _w((lambda *s: torch.randn(*s, dtype=torch.bfloat16) * 0.8)(B, Hq, Sq, D)),
        "k": _w((lambda *s: torch.randn(*s, dtype=torch.bfloat16) * 0.8)(B, Hkv, Sk, D)),
        "v": _w((lambda *s: torch.randn(*s, dtype=torch.bfloat16) * 0.05)(B, Hkv, Sk, D)),
    }

def reference(q, k, v):
    B, Hq, Sq, D = q.shape
    Hkv = k.shape[1]
    rep = Hq // Hkv
    k = (lambda x, n, axis: torch.repeat_interleave(x, n, dim=axis))(k, rep, axis=1)
    v = (lambda x, n, axis: torch.repeat_interleave(x, n, dim=axis))(v, rep, axis=1)
    scale = D ** -0.5
    scores = torch.einsum("bhqd,bhkd->bhqk", q, k) * scale
    p = _softmax(scores, axis=-1)
    return torch.einsum("bhqk,bhkd->bhqd", p, v)
```

```python
import sys, math, argparse

KNAME = "standalone__gqa_softmax__near_ridge_kernel"
C_SCALE = (128 ** -0.5) * math.log2(math.e)
import struct
def f32bits(x): return struct.unpack("<I", struct.pack("<f", x))[0]

class Gen:
    def __init__(self, opt):
        self.o = opt
        self.L = []
        self.vm = []
        self.nstamp = 0
    def e(self, s): self.L.append("    " + s)
    def lab(self, s): self.L.append(s + ":")
    def c(self, s): self.L.append("    ; " + s)
    def vm_issue(self, tag): self.vm.append(tag)
    def vm_wait(self, tags):
        last = max(i for i, t in enumerate(self.vm) if t in tags)
        n = len(self.vm) - 1 - last
        self.e(f"s_waitcnt vmcnt({n})")
    def stamp(self):
        if not self.o.stamps: return
        i = self.nstamp; self.nstamp += 1
        assert i < 24
        self.e(f"s_memtime s[{50+2*i}:{51+2*i}]")

def build(opt):
    g = Gen(opt); e = g.e
    D = opt.dist
    RK = D + 1; RV = D + 1
    KBASE = 0; VBASE = RK * 16384
    FLAG_OFF = (RK + RV) * 16384
    lds_bytes = FLAG_OFF + 64
    ldflag = opt.ldflag; qflag = opt.qflag; stflag = opt.stflag
    sKSRD, sVSRD, sQSRD, sOSRD = 8, 12, 16, 20
    sW2K = 24
    sKVOFF = 25
    sQOFF = 26
    sC = 27
    sREDO = 28
    sTMP = 29
    sWID = 30
    sT2 = 31
    vQ = 8
    vO = 40
    vS = [104, 120]
    vP = [136, 144]
    vK = 152
    vV = 184
    vX = [216, 217]
    vT = [218, 219, 220, 221]
    vL = 222; vMC = 223; vM = 224
    vKA = 226
    vVA = 234
    vDK = [238, 239]
    vDV = 240
    vQO = 241
    vA, vB, vC_ = 1, 2, 3
    NV = 248

    g.L.append(f"; @launch grid=(256,1,1) block=(512,1,1) lds={lds_bytes}")
    g.L.append('.amdgcn_target "amdgcn-amd-amdhsa--gfx950"')
    g.L.append(".text"); g.L.append(f".globl {KNAME}"); g.L.append(".p2align 8"); g.L.append(f".type {KNAME},@function")
    g.lab(KNAME)
    g.stamp()
    if opt.stamps: e("s_memrealtime s[46:47]")
    e("s_cmp_ge_u32 s2, 256")
    e("s_cbranch_scc1 L_end")
    e("s_load_dwordx4 s[4:7], s[0:1], 0")
    e("s_load_dwordx4 s[32:35], s[0:1], 16")
    if opt.stamps: e("s_load_dwordx2 s[44:45], s[0:1], 40")
    e(f"v_lshrrev_b32 v{vA}, 6, v0")
    e(f"v_and_b32 v{vB}, 63, v0")
    e(f"v_readfirstlane_b32 s{sWID}, v{vA}")
    e("s_and_b32 s36, s2, 7")
    e("s_lshr_b32 s37, s2, 3")
    e("s_lshl_b32 s38, s36, 5")
    e("s_add_u32 s38, s38, s37")
    e(f"s_lshl_b32 s{sQOFF}, s38, 16")
    e("s_lshl_b32 s38, s36, 3")
    e("s_lshr_b32 s37, s37, 2")
    e("s_add_u32 s38, s38, s37")
    e(f"s_lshl_b32 s{sKVOFF}, s38, 17")
    e(f"s_mov_b32 s{sREDO}, 0")
    e(f"s_mov_b32 s{sC}, 0x{f32bits(C_SCALE):08x}")
    e(f"s_lshl_b32 s{sW2K}, s{sWID}, 11")
    e(f"v_lshrrev_b32 v{vC_}, 4, v{vB}")
    e(f"v_and_b32 v4, 15, v{vB}")
    e(f"v_lshlrev_b32 v5, 3, v{vA}")
    e(f"v_add_u32 v5, v5, v{vC_}")
    e(f"v_and_b32 v6, 15, v5")
    e(f"v_xor_b32 v6, v6, v4")
    e(f"v_lshlrev_b32 v5, 8, v5")
    e(f"v_lshl_add_u32 v{vDK[0]}, v6, 4, v5")
    e(f"v_xor_b32 v{vDK[1]}, 64, v{vDK[0]}")
    e(f"v_lshlrev_b32 v6, 2, v{vC_}")
    e(f"v_xor_b32 v6, v6, v4")
    e(f"v_lshl_add_u32 v{vDV}, v6, 4, v5")
    e(f"v_and_b32 v4, 31, v{vB}")
    e(f"v_lshrrev_b32 v6, 5, v{vB}")
    e(f"v_lshl_add_u32 v5, v{vA}, 5, v4")
    e(f"v_lshlrev_b32 v5, 8, v5")
    e(f"v_lshl_add_u32 v{vQO}, v6, 4, v5")
    e("s_waitcnt lgkmcnt(0)")
    def srd(d, p, n):
        e(f"s_mov_b32 s{d}, s{p}"); e(f"s_and_b32 s{d+1}, s{p+1}, 0xffff"); e(f"s_mov_b32 s{d+2}, {n}"); e(f"s_mov_b32 s{d+3}, 0x20000")
    srd(sKSRD, 6, 8388608); srd(sQSRD, 4, 16777216); srd(sVSRD, 32, 8388608); srd(sOSRD, 34, 16777216)
    g.lab("L_restart")
    g.vm = []
    def dma(kind, t):
        base = (KBASE + (t % RK) * 16384) if kind == "K" else (VBASE + (t % RV) * 16384)
        srdn = sKSRD if kind == "K" else sVSRD
        out = []
        out.append(f"s_add_u32 m0, s{sW2K}, {base}")
        out.append(f"s_add_u32 s{sTMP}, s{sKVOFF}, {t*16384}")
        for p in range(2):
            va = vDK[p] if kind == "K" else vDV
            out.append((f"buffer_load_dwordx4 v{va}, s[{srdn}:{srdn+3}], s{sTMP} offen offset:{1024*p} {ldflag} lds", f"{kind}{t}"))
        return out
    def emit_list(lst):
        for x in lst:
            if isinstance(x, tuple):
                e(x[0]); g.vm_issue(x[1])
            else: e(x)
    emit_list(dma("K", 0))
    for s in range(8):
        e(f"buffer_load_dwordx4 v[{vQ+4*s}:{vQ+4*s+3}], v{vQO}, s[{sQSRD}:{sQSRD+3}], s{sQOFF} offen offset:{32*s} {qflag}"); g.vm_issue(f"Q{s}")
    issued = [("K", 0)]
    order = []
    for t in range(8):
        order.append(("V", t))
        if t + 1 < 8: order.append(("K", t + 1))
    init = [x for x in order if (x[0] == "K" and x[1] <= D - 1) or (x[0] == "V" and x[1] <= D - 2)]
    for x in init: emit_list(dma(*x))
    e(f"v_and_b32 v4, 31, v{vB}")
    e(f"v_lshrrev_b32 v6, 5, v{vB}")
    e(f"v_and_b32 v5, 15, v4")
    e(f"v_xor_b32 v5, v5, v6")
    e(f"v_lshlrev_b32 v5, 4, v5")
    e(f"v_lshl_add_u32 v{vKA}, v4, 8, v5")
    for s in range(1, 8):
        e(f"v_xor_b32 v{vKA+s}, {32*s}, v{vKA}")
    e(f"v_bfe_u32 v4, v{vB}, 2, 2")
    e(f"v_lshl_add_u32 v5, v6, 2, v4")
    e(f"v_lshlrev_b32 v5, 8, v5")
    e(f"v_lshl_add_u32 v5, v4, 6, v5")
    e(f"v_bfe_u32 v4, v{vB}, 4, 1")
    e(f"v_lshl_add_u32 v5, v4, 5, v5")
    e(f"v_and_b32 v4, 3, v{vB}")
    e(f"v_lshl_add_u32 v5, v4, 3, v5")
    e(f"v_add_u32 v{vVA}, {VBASE}, v5")
    for db in range(1, 4):
        e(f"v_xor_b32 v{vVA+db}, {64*db}, v{vVA}")
    e(f"v_mov_b32 v{vL}, 0")
    e(f"v_mov_b32 v4, {FLAG_OFF}")
    e(f"ds_write_b32 v4, v{vL}")

    def kread(n, s):
        t, blk = n >> 1, n & 1
        off = KBASE + (t % RK) * 16384 + blk * 8192
        return f"ds_read_b128 v[{vK+4*s}:{vK+4*s+3}], v{vKA+s} offset:{off}"
    def vread(n, f, h):
        t, blk = n >> 1, n & 1
        j, db = (f >> 2, f & 3)
        off = (t % RV) * 16384 + (blk * 32 + 16 * j + 8 * h) * 256
        return f"ds_read_b64_tr_b16 v[{vV+4*f+2*h}:{vV+4*f+2*h+1}], v{vVA+db} offset:{off}"
    def qk(n, s):
        S = vS[n & 1]
        cin = "0" if s == 0 else f"v[{S}:{S+15}]"
        return f"v_mfma_f32_32x32x16_bf16 v[{S}:{S+15}], v[{vK+4*s}:{vK+4*s+3}], v[{vQ+4*s}:{vQ+4*s+3}], {cin}"
    def pv(n, f):
        j, db = (f >> 2, f & 3)
        O = vO + 16 * db; P = vP[n & 1] + 4 * j
        cin = "0" if (n == 0 and j == 0) else f"v[{O}:{O+15}]"
        return f"v_mfma_f32_32x32x16_bf16 v[{O}:{O+15}], v[{vV+4*f}:{vV+4*f+3}], v[{P}:{P+3}], {cin}"
    def fma(n, i): return f"v_fma_f32 v{vX[i&1]}, v{vS[n&1]+i}, s{sC}, -v{vMC}"
    def exp(n, i): return f"v_exp_f32 v{vT[i&3]}, v{vX[i&1]}"
    def add(n, i): return f"v_add_f32 v{vL}, v{vL}, v{vT[i&3]}"
    def cvt(n, i): return f"v_cvt_pk_bf16_f32 v{vP[n&1]+(i>>1)}, v{vT[i&3]}, v{vT[(i+1)&3]}"

    def barrier_point(t):
        tags = set()
        if t <= 7: tags.add(f"K{t}")
        if t >= 1: tags.add(f"V{t-1}")
        g.vm_wait(tags)
        e("s_waitcnt lgkmcnt(0)")
        e("s_barrier")
    def after_P(t):
        out = []
        if t + D - 1 <= 7 and t + D - 1 >= 0: out += dma("V", t + D - 1)
        if t + D <= 7: out += dma("K", t + D)
        return out

    g.stamp()
    barrier_point(0)
    g.stamp()
    for s in range(8): e(kread(0, s))
    emit_list(after_P(0))
    g.vm_wait({"Q7"})
    e("s_waitcnt lgkmcnt(0)")
    g.stamp()
    for s in range(8):
        e(qk(0, s)); e(kread(1, s))
    S0 = vS[0]
    e("s_waitcnt lgkmcnt(4)")
    e(qk(1, 0)); e(qk(1, 1)); e(qk(1, 2)); e(qk(1, 3))
    e("s_waitcnt lgkmcnt(0)")
    e("s_nop 4")
    e(f"s_cmp_lg_u32 s{sREDO}, 0")
    e("s_cbranch_scc1 L_have_m")
    e(f"v_max3_f32 v{vM}, v{S0}, v{S0+1}, v{S0+2}")
    for i in range(3, 15, 2):
        e(f"v_max3_f32 v{vM}, v{vM}, v{S0+i}, v{S0+i+1}")
    e(f"v_max_f32 v{vM}, v{vM}, v{S0+15}")
    e(f"v_mov_b32 v4, v{vM}")
    e("s_nop 1")
    e(f"v_permlane32_swap_b32 v{vM}, v4")
    e(f"v_max_f32 v{vM}, v{vM}, v4")
    g.lab("L_have_m")
    e(f"v_mul_f32 v{vMC}, s{sC}, v{vM}")
    e(qk(1, 4))
    e(fma(0, 0))

    def valu(n, gi):
        out = [exp(n, gi)]
        out.append(fma(n, gi + 1) if gi < 15 else (fma(n + 1, 0) if n < 15 else None))
        if gi >= 1: out.append(add(n, gi - 1))
        elif n >= 1: out.append(add(n - 1, 15))
        if gi % 2 == 0:
            if gi >= 2: out.append(cvt(n, gi - 2))
            elif n >= 1: out.append(cvt(n - 1, 14))
        return [x for x in out if x]

    mf = [qk(1, 5), qk(1, 6), qk(1, 7)]
    for gi in range(8):
        if mf: e(mf.pop(0))
        for x in valu(0, gi): e(x)
    barrier_point(1)
    extra = after_P(1)
    for gi in range(8, 16):
        e(kread(2, gi - 8))
        for x in valu(0, gi): e(x)
        if extra: emit_list([extra.pop(0)])
    emit_list(extra)
    g.stamp()
    for n in range(1, 15):
        extra = []
        for gi in range(16):
            if gi == 0: e("s_waitcnt lgkmcnt(4)")
            if gi == 4: e("s_waitcnt lgkmcnt(8)")
            if gi == 8:
                if n % 2 == 0:
                    t = n // 2 + 1
                    barrier_point(t)
                    extra = after_P(t)
                else:
                    e("s_waitcnt lgkmcnt(8)")
            if gi == 12 and n % 2 == 1: e("s_waitcnt lgkmcnt(4)")
            if gi < 8:
                e(qk(n + 1, gi)); e(vread(n - 1, gi, 0)); e(vread(n - 1, gi, 1))
            else:
                e(pv(n - 1, gi - 8))
                if n < 14: e(kread(n + 2, gi - 8))
                else:
                    e(vread(14, gi - 8, 0)); e(vread(14, gi - 8, 1))
            for x in valu(n, gi): e(x)
            if gi >= 8 and extra: emit_list([extra.pop(0)])
        emit_list(extra)
        if n % 2 == 0: g.stamp()
    for gi in range(16):
        if gi % 2 == 0:
            f = gi // 2
            if f == 0: e("s_waitcnt lgkmcnt(8)")
            if f == 4: e("s_waitcnt lgkmcnt(8)")
            e(pv(14, f)); e(vread(15, f, 0)); e(vread(15, f, 1))
        for x in valu(15, gi): e(x)
    e(add(15, 15)); e(cvt(15, 14))
    g.stamp()
    e("s_waitcnt lgkmcnt(0)")
    e(pv(15, 0))
    e(f"v_mov_b32 v4, v{vL}")
    e(pv(15, 4))
    e("s_nop 0")
    e(f"v_permlane32_swap_b32 v{vL}, v4")
    e(pv(15, 1))
    e(f"v_add_f32 v{vL}, v{vL}, v4")
    e(f"v_rcp_f32 v5, v{vL}")
    e(pv(15, 5))
    e(f"s_mov_b32 s{sTMP}, 0x{f32bits(2.0**30):08x}")
    e(f"v_cmp_nle_f32 vcc, v{vL}, s{sTMP}" if False else f"v_cmp_nge_f32 vcc, s{sTMP}, v{vL}")
    e(pv(15, 2)); e(pv(15, 6))
    def norm(db):
        O = vO + 16 * db
        R = vS[0] + 8 * (db & 1) if False else vK + 8 * db
        for i in range(16): e(f"v_mul_f32 v{O+i}, v5, v{O+i}")
        for i in range(8): e(f"v_cvt_pk_bf16_f32 v{R+i}, v{O+2*i}, v{O+2*i+1}")
        e("s_nop 1")
        for pr in range(2):
            a = R + 4 * pr
            e(f"v_permlane32_swap_b32 v{a}, v{a+2}")
            e(f"v_permlane32_swap_b32 v{a+1}, v{a+3}")
        for pr in range(2):
            a = R + 4 * pr
            e(f"buffer_store_dwordx4 v[{a}:{a+3}], v{vQO}, s[{sOSRD}:{sOSRD+3}], s{sQOFF} offen offset:{64*db+32*pr} {stflag}")
    e(pv(15, 3)); e(pv(15, 7))
    e("s_nop 7")
    norm(0); norm(1); norm(2); norm(3)
    g.stamp()
    e("s_cbranch_vccz L_ok")
    e(f"v_mov_b32 v4, {FLAG_OFF}")
    e("v_mov_b32 v6, 1")
    e("ds_write_b32 v4, v6")
    g.lab("L_ok")
    e("s_waitcnt lgkmcnt(0)")
    e("s_barrier")
    e(f"v_mov_b32 v4, {FLAG_OFF}")
    e("ds_read_b32 v6, v4")
    e("s_waitcnt lgkmcnt(0)")
    e(f"v_readfirstlane_b32 s{sTMP}, v6")
    e("s_nop 3")
    e(f"s_andn2_b32 s{sTMP}, s{sTMP}, s{sREDO}")
    e(f"s_cmp_lg_u32 s{sTMP}, 0")
    e("s_cbranch_scc1 L_redo")
    if opt.stamps:
        e("s_waitcnt vmcnt(0)")
        g.stamp()
        e("s_memrealtime s[48:49]")
        e("s_waitcnt lgkmcnt(0)")
        e(f"s_lshl_b32 s36, s2, 3"); e(f"s_add_u32 s36, s36, s{sWID}"); e("s_lshl_b32 s36, s36, 7")
        e("v_mov_b32 v4, s36")
        e("v_cmp_eq_u32 vcc, 0, v2"); e("s_and_saveexec_b64 s[40:41], vcc")
        e("v_mov_b32 v6, s46"); e("global_store_dword v4, v6, s[44:45] offset:0")
        e("v_mov_b32 v6, s48"); e("global_store_dword v4, v6, s[44:45] offset:4")
        for i in range(1, g.nstamp):
            e(f"s_sub_u32 s36, s{50+2*i}, s50"); e("v_mov_b32 v6, s36"); e(f"global_store_dword v4, v6, s[44:45] offset:{4+4*i}")
        e("s_waitcnt vmcnt(0)")
    g.lab("L_end")
    e("s_endpgm")
    g.lab("L_redo")
    e("s_barrier")
    e(f"s_mov_b32 s{sREDO}, 1")
    e(f"v_and_b32 v4, 31, v{vB}"); e(f"v_lshrrev_b32 v6, 5, v{vB}")
    e(f"v_lshlrev_b32 v4, 8, v4"); e(f"v_lshl_add_u32 v4, v6, 4, v4")
    e(f"v_mov_b32 v{vM}, 0xff800000")
    e(f"s_mov_b32 s{sT2}, s{sKVOFF}")
    e(f"s_add_u32 s39, s{sKVOFF}, 131072")
    g.lab("L_redo_loop")
    e("s_waitcnt vmcnt(0)")
    for s in range(8):
        e(f"buffer_load_dwordx4 v[{vK+4*s}:{vK+4*s+3}], v4, s[{sKSRD}:{sKSRD+3}], s{sT2} offen offset:{32*s}")
    e("s_waitcnt vmcnt(0)")
    for s in range(8): e(qk(0, s))
    e("s_nop 15"); e("s_nop 7")
    for i in range(0, 16, 2):
        e(f"v_max3_f32 v{vM}, v{vM}, v{S0+i}, v{S0+i+1}")
    e(f"s_add_u32 s{sT2}, s{sT2}, 8192")
    e(f"s_cmp_lt_u32 s{sT2}, s39")
    e("s_cbranch_scc1 L_redo_loop")
    e(f"v_mov_b32 v4, v{vM}")
    e("s_nop 1")
    e(f"v_permlane32_swap_b32 v{vM}, v4")
    e(f"v_max_f32 v{vM}, v{vM}, v4")
    e("s_branch L_restart")
    g.L.append('.section .rodata,"a"'); g.L.append(".p2align 6"); g.L.append(f".amdhsa_kernel {KNAME}")
    for l in [f".amdhsa_next_free_vgpr {NV}", ".amdhsa_next_free_sgpr 102", f".amdhsa_accum_offset {NV}", ".amdhsa_group_segment_fixed_size 0",
              ".amdhsa_kernarg_size 48", ".amdhsa_user_sgpr_count 2", ".amdhsa_user_sgpr_kernarg_segment_ptr 1", ".amdhsa_system_sgpr_workgroup_id_x 1"]:
        g.L.append("  " + l)
    g.L.append(".end_amdhsa_kernel")
    return "\n".join(g.L) + "\n"

if __name__ == "__main__":
    ap = argparse.ArgumentParser()
    ap.add_argument("-o", default="standalone__gqa_softmax__near_ridge.s")
    ap.add_argument("--dist", type=int, default=2)
    ap.add_argument("--stamps", action="store_true")
    ap.add_argument("--ldflag", default="")
    ap.add_argument("--qflag", default="")
    ap.add_argument("--stflag", default="")
    opt = ap.parse_args()
    open(opt.o, "w").write(build(opt))
```

```python
import sys, math, argparse

KNAME = "standalone__gqa_softmax__near_ridge_kernel"
C_SCALE = (128 ** -0.5) * math.log2(math.e)
import struct
def f32bits(x): return struct.unpack("<I", struct.pack("<f", x))[0]

class Gen:
    def __init__(self, opt):
        self.o = opt
        self.L = []
        self.vm = []
        self.nstamp = 0
    def e(self, s): self.L.append("    " + s)
    def lab(self, s): self.L.append(s + ":")
    def c(self, s): self.L.append("    ; " + s)
    def vm_issue(self, tag): self.vm.append(tag)
    def vm_wait(self, tags):
        last = max(i for i, t in enumerate(self.vm) if t in tags)
        n = len(self.vm) - 1 - last
        self.e(f"s_waitcnt vmcnt({n})")
    def stamp(self):
        if self.o.probe is not None:
            i = self.nstamp; self.nstamp += 1
            if i == 0: self.e("s_memrealtime s[60:61]")
            if i == self.o.probe: self.e("s_memrealtime s[62:63]")
            return
        if not self.o.stamps: return
        i = self.nstamp; self.nstamp += 1
        assert i < 24
        self.e(f"s_memtime s[{50+2*i}:{51+2*i}]")

def build(opt):
    g = Gen(opt); e = g.e
    D = opt.dist
    RK = D + 1; RV = D + 1
    KBASE = 0; VBASE = RK * 16384
    FLAG_OFF = (RK + RV) * 16384
    lds_bytes = FLAG_OFF + 64
    ldflag = opt.ldflag; qflag = opt.qflag; stflag = opt.stflag
    sKSRD, sVSRD, sQSRD, sOSRD = 8, 12, 16, 20
    sW2K = 24
    sKVOFF = 25
    sQOFF = 26
    sC = 27
    sREDO = 28
    sTMP = 29
    sWID = 30
    sT2 = 31
    vQ = 8
    vO = 40
    vS = [104, 120]
    vP = [136, 144]
    vK = 152
    vV = 184
    vX = [216, 217]
    vT = [218, 219, 220, 221]
    vL = 222; vMC = 223; vM = 224
    vKA = 226
    vVA = 234
    vDK = [238, 239]
    vDV = 240
    vQO = 241
    vA, vB, vC_ = 1, 2, 3
    NV = 248

    g.L.append(f"; @launch grid=(256,1,1) block=(512,1,1) lds={lds_bytes}")
    g.L.append('.amdgcn_target "amdgcn-amd-amdhsa--gfx950"')
    g.L.append(".text"); g.L.append(f".globl {KNAME}"); g.L.append(".p2align 8"); g.L.append(f".type {KNAME},@function")
    g.lab(KNAME)
    g.stamp()
    if opt.stamps: e("s_memrealtime s[46:47]")
    e("s_cmp_ge_u32 s2, 256")
    e("s_cbranch_scc1 L_end")
    e("s_load_dwordx4 s[4:7], s[0:1], 0")
    e("s_load_dwordx4 s[32:35], s[0:1], 16")
    if opt.stamps: e("s_load_dwordx2 s[44:45], s[0:1], 40")
    e(f"v_lshrrev_b32 v{vA}, 6, v0")
    e(f"v_and_b32 v{vB}, 63, v0")
    e(f"v_readfirstlane_b32 s{sWID}, v{vA}")
    e("s_and_b32 s36, s2, 7")
    e("s_lshr_b32 s37, s2, 3")
    e("s_lshl_b32 s38, s36, 5")
    e("s_add_u32 s38, s38, s37")
    e(f"s_lshl_b32 s{sQOFF}, s38, 16")
    e("s_lshl_b32 s38, s36, 3")
    e("s_lshr_b32 s37, s37, 2")
    e("s_add_u32 s38, s38, s37")
    e(f"s_lshl_b32 s{sKVOFF}, s38, 17")
    e(f"s_mov_b32 s{sREDO}, 0")
    e(f"s_mov_b32 s{sC}, 0x{f32bits(C_SCALE):08x}")
    e(f"s_lshl_b32 s{sW2K}, s{sWID}, 11")
    e(f"v_lshrrev_b32 v{vC_}, 4, v{vB}")
    e(f"v_and_b32 v4, 15, v{vB}")
    e(f"v_lshlrev_b32 v5, 3, v{vA}")
    e(f"v_add_u32 v5, v5, v{vC_}")
    e(f"v_and_b32 v6, 15, v5")
    e(f"v_xor_b32 v6, v6, v4")
    e(f"v_lshlrev_b32 v5, 8, v5")
    e(f"v_lshl_add_u32 v{vDK[0]}, v6, 4, v5")
    e(f"v_xor_b32 v{vDK[1]}, 64, v{vDK[0]}")
    e(f"v_lshlrev_b32 v6, 2, v{vC_}")
    e(f"v_xor_b32 v6, v6, v4")
    e(f"v_lshl_add_u32 v{vDV}, v6, 4, v5")
    e(f"v_and_b32 v4, 31, v{vB}")
    e(f"v_lshrrev_b32 v6, 5, v{vB}")
    e(f"v_lshl_add_u32 v5, v{vA}, 5, v4")
    e(f"v_lshlrev_b32 v5, 8, v5")
    e(f"v_lshl_add_u32 v{vQO}, v6, 4, v5")
    e("s_waitcnt lgkmcnt(0)")
    def srd(d, p, n):
        e(f"s_mov_b32 s{d}, s{p}"); e(f"s_and_b32 s{d+1}, s{p+1}, 0xffff"); e(f"s_mov_b32 s{d+2}, {n}"); e(f"s_mov_b32 s{d+3}, 0x20000")
    srd(sKSRD, 6, 8388608); srd(sQSRD, 4, 16777216); srd(sVSRD, 32, 8388608); srd(sOSRD, 34, 16777216)
    g.lab("L_restart")
    g.vm = []
    def dma(kind, t):
        base = (KBASE + (t % RK) * 16384) if kind == "K" else (VBASE + (t % RV) * 16384)
        srdn = sKSRD if kind == "K" else sVSRD
        out = []
        out.append(f"s_add_u32 m0, s{sW2K}, {base}")
        out.append(f"s_add_u32 s{sTMP}, s{sKVOFF}, {t*16384}")
        for p in range(2):
            va = vDK[p] if kind == "K" else vDV
            out.append((f"buffer_load_dwordx4 v{va}, s[{srdn}:{srdn+3}], s{sTMP} offen offset:{1024*p} {ldflag} lds", f"{kind}{t}"))
        return out
    def emit_list(lst):
        for x in lst:
            if isinstance(x, tuple):
                e(x[0]); g.vm_issue(x[1])
            else: e(x)
    emit_list(dma("K", 0))
    for s in range(8):
        e(f"buffer_load_dwordx4 v[{vQ+4*s}:{vQ+4*s+3}], v{vQO}, s[{sQSRD}:{sQSRD+3}], s{sQOFF} offen offset:{32*s} {qflag}"); g.vm_issue(f"Q{s}")
    issued = [("K", 0)]
    order = []
    for t in range(8):
        order.append(("V", t))
        if t + 1 < 8: order.append(("K", t + 1))
    init = [x for x in order if (x[0] == "K" and x[1] <= D - 1) or (x[0] == "V" and x[1] <= D - 2)]
    for x in init: emit_list(dma(*x))
    e(f"v_and_b32 v4, 31, v{vB}")
    e(f"v_lshrrev_b32 v6, 5, v{vB}")
    e(f"v_and_b32 v5, 15, v4")
    e(f"v_xor_b32 v5, v5, v6")
    e(f"v_lshlrev_b32 v5, 4, v5")
    e(f"v_lshl_add_u32 v{vKA}, v4, 8, v5")
    for s in range(1, 8):
        e(f"v_xor_b32 v{vKA+s}, {32*s}, v{vKA}")
    e(f"v_bfe_u32 v4, v{vB}, 2, 2")
    e(f"v_lshl_add_u32 v5, v6, 2, v4")
    e(f"v_lshlrev_b32 v5, 8, v5")
    e(f"v_lshl_add_u32 v5, v4, 6, v5")
    e(f"v_bfe_u32 v4, v{vB}, 4, 1")
    e(f"v_lshl_add_u32 v5, v4, 5, v5")
    e(f"v_and_b32 v4, 3, v{vB}")
    e(f"v_lshl_add_u32 v5, v4, 3, v5")
    e(f"v_add_u32 v{vVA}, {VBASE}, v5")
    for db in range(1, 4):
        e(f"v_xor_b32 v{vVA+db}, {64*db}, v{vVA}")
    e(f"v_mov_b32 v{vL}, 0")
    e(f"v_mov_b32 v4, {FLAG_OFF}")
    e(f"ds_write_b32 v4, v{vL}")

    def kread(n, s):
        t, blk = n >> 1, n & 1
        off = KBASE + (t % RK) * 16384 + blk * 8192
        return f"ds_read_b128 v[{vK+4*s}:{vK+4*s+3}], v{vKA+s} offset:{off}"
    def vread(n, f, h):
        t, blk = n >> 1, n & 1
        j, db = (f >> 2, f & 3)
        off = (t % RV) * 16384 + (blk * 32 + 16 * j + 8 * h) * 256
        return f"ds_read_b64_tr_b16 v[{vV+4*f+2*h}:{vV+4*f+2*h+1}], v{vVA+db} offset:{off}"
    def qk(n, s):
        S = vS[n & 1]
        cin = "0" if s == 0 else f"v[{S}:{S+15}]"
        return f"v_mfma_f32_32x32x16_bf16 v[{S}:{S+15}], v[{vK+4*s}:{vK+4*s+3}], v[{vQ+4*s}:{vQ+4*s+3}], {cin}"
    def pv(n, f):
        j, db = (f >> 2, f & 3)
        O = vO + 16 * db; P = vP[n & 1] + 4 * j
        cin = "0" if (n == 0 and j == 0) else f"v[{O}:{O+15}]"
        return f"v_mfma_f32_32x32x16_bf16 v[{O}:{O+15}], v[{vV+4*f}:{vV+4*f+3}], v[{P}:{P+3}], {cin}"
    def fma(n, i): return f"v_fma_f32 v{vX[i&1]}, v{vS[n&1]+i}, s{sC}, -v{vMC}"
    def exp(n, i): return f"v_exp_f32 v{vT[i&3]}, v{vX[i&1]}"
    def add(n, i): return f"v_add_f32 v{vL}, v{vL}, v{vT[i&3]}"
    def cvt(n, i): return f"v_cvt_pk_bf16_f32 v{vP[n&1]+(i>>1)}, v{vT[i&3]}, v{vT[(i+1)&3]}"

    def barrier_point(t):
        tags = set()
        if t <= 7: tags.add(f"K{t}")
        if t >= 1: tags.add(f"V{t-1}")
        g.vm_wait(tags)
        e("s_waitcnt lgkmcnt(0)")
        e("s_barrier")
    def after_P(t):
        out = []
        if t + D - 1 <= 7 and t + D - 1 >= 0: out += dma("V", t + D - 1)
        if t + D <= 7: out += dma("K", t + D)
        return out

    g.stamp()
    barrier_point(0)
    g.stamp()
    for s in range(8): e(kread(0, s))
    emit_list(after_P(0))
    g.vm_wait({"Q7"})
    e("s_waitcnt lgkmcnt(0)")
    g.stamp()
    for s in range(8):
        e(qk(0, s)); e(kread(1, s))
    S0 = vS[0]
    e("s_waitcnt lgkmcnt(4)")
    e(qk(1, 0)); e(qk(1, 1)); e(qk(1, 2)); e(qk(1, 3))
    e("s_waitcnt lgkmcnt(0)")
    e("s_nop 4")
    e(f"s_cmp_lg_u32 s{sREDO}, 0")
    e("s_cbranch_scc1 L_have_m")
    e(f"v_max3_f32 v{vM}, v{S0}, v{S0+1}, v{S0+2}")
    for i in range(3, 15, 2):
        e(f"v_max3_f32 v{vM}, v{vM}, v{S0+i}, v{S0+i+1}")
    e(f"v_max_f32 v{vM}, v{vM}, v{S0+15}")
    e(f"v_mov_b32 v4, v{vM}")
    e("s_nop 1")
    e(f"v_permlane32_swap_b32 v{vM}, v4")
    e(f"v_max_f32 v{vM}, v{vM}, v4")
    g.lab("L_have_m")
    e(f"v_mul_f32 v{vMC}, s{sC}, v{vM}")
    e(qk(1, 4))
    e(fma(0, 0))

    def valu(n, gi):
        out = [exp(n, gi)]
        out.append(fma(n, gi + 1) if gi < 15 else (fma(n + 1, 0) if n < 15 else None))
        if gi >= 1: out.append(add(n, gi - 1))
        elif n >= 1: out.append(add(n - 1, 15))
        if gi % 2 == 0:
            if gi >= 2: out.append(cvt(n, gi - 2))
            elif n >= 1: out.append(cvt(n - 1, 14))
        return [x for x in out if x]

    mf = [qk(1, 5), qk(1, 6), qk(1, 7)]
    for gi in range(8):
        if mf: e(mf.pop(0))
        for x in valu(0, gi): e(x)
    barrier_point(1)
    extra = after_P(1)
    for gi in range(8, 16):
        e(kread(2, gi - 8))
        for x in valu(0, gi): e(x)
        if extra: emit_list([extra.pop(0)])
    emit_list(extra)
    g.stamp()
    for n in range(1, 15):
        extra = []
        for gi in range(16):
            if gi == 0: e("s_waitcnt lgkmcnt(4)")
            if gi == 4: e("s_waitcnt lgkmcnt(8)")
            if gi == 8:
                if n % 2 == 0:
                    t = n // 2 + 1
                    barrier_point(t)
                    extra = after_P(t)
                else:
                    e("s_waitcnt lgkmcnt(8)")
            if gi == 12 and n % 2 == 1: e("s_waitcnt lgkmcnt(4)")
            if gi < 8:
                e(qk(n + 1, gi)); e(vread(n - 1, gi, 0)); e(vread(n - 1, gi, 1))
            else:
                e(pv(n - 1, gi - 8))
                if n < 14: e(kread(n + 2, gi - 8))
                else:
                    e(vread(14, gi - 8, 0)); e(vread(14, gi - 8, 1))
            for x in valu(n, gi): e(x)
            if gi >= 8 and extra: emit_list([extra.pop(0)])
        emit_list(extra)
        if n % 2 == 0: g.stamp()
    for gi in range(16):
        if gi % 2 == 0:
            f = gi // 2
            if f == 0: e("s_waitcnt lgkmcnt(8)")
            if f == 4: e("s_waitcnt lgkmcnt(8)")
            e(pv(14, f)); e(vread(15, f, 0)); e(vread(15, f, 1))
        for x in valu(15, gi): e(x)
    e(add(15, 15)); e(cvt(15, 14))
    g.stamp()
    e("s_waitcnt lgkmcnt(0)")
    e(pv(15, 0))
    e(f"v_mov_b32 v4, v{vL}")
    e(pv(15, 4))
    e("s_nop 0")
    e(f"v_permlane32_swap_b32 v{vL}, v4")
    e(pv(15, 1))
    e(f"v_add_f32 v{vL}, v{vL}, v4")
    e(f"v_rcp_f32 v5, v{vL}")
    e(pv(15, 5))
    e(f"s_mov_b32 s{sTMP}, 0x{f32bits(2.0**30):08x}")
    e(f"v_cmp_nle_f32 vcc, v{vL}, s{sTMP}" if False else f"v_cmp_nge_f32 vcc, s{sTMP}, v{vL}")
    e(pv(15, 2)); e(pv(15, 6))
    def norm(db):
        O = vO + 16 * db
        R = vS[0] + 8 * (db & 1) if False else vK + 8 * db
        for i in range(16): e(f"v_mul_f32 v{O+i}, v5, v{O+i}")
        for i in range(8): e(f"v_cvt_pk_bf16_f32 v{R+i}, v{O+2*i}, v{O+2*i+1}")
        e("s_nop 1")
        for pr in range(2):
            a = R + 4 * pr
            e(f"v_permlane32_swap_b32 v{a}, v{a+2}")
            e(f"v_permlane32_swap_b32 v{a+1}, v{a+3}")
        for pr in range(2):
            a = R + 4 * pr
            e(f"buffer_store_dwordx4 v[{a}:{a+3}], v{vQO}, s[{sOSRD}:{sOSRD+3}], s{sQOFF} offen offset:{64*db+32*pr} {stflag}")
    e(pv(15, 3)); e(pv(15, 7))
    e("s_nop 7")
    norm(0); norm(1); norm(2); norm(3)
    g.stamp()
    e("s_cbranch_vccz L_ok")
    e(f"v_mov_b32 v4, {FLAG_OFF}")
    e("v_mov_b32 v6, 1")
    e("ds_write_b32 v4, v6")
    g.lab("L_ok")
    e("s_waitcnt lgkmcnt(0)")
    e("s_barrier")
    e(f"v_mov_b32 v4, {FLAG_OFF}")
    e("ds_read_b32 v6, v4")
    e("s_waitcnt lgkmcnt(0)")
    e(f"v_readfirstlane_b32 s{sTMP}, v6")
    e("s_nop 3")
    e(f"s_andn2_b32 s{sTMP}, s{sTMP}, s{sREDO}")
    e(f"s_cmp_lg_u32 s{sTMP}, 0")
    e("s_cbranch_scc1 L_redo")
    if opt.probe is not None:
        e("s_waitcnt vmcnt(0)")
        g.stamp()
        e("s_waitcnt lgkmcnt(0)")
        e("s_sub_u32 s64, s62, s60")
        e(f"s_mul_i32 s64, s64, {opt.probemul}")
        e("s_add_u32 s64, s64, 6000")
        g.lab("L_dly")
        e("s_sleep 2")
        e("s_memrealtime s[66:67]"); e("s_waitcnt lgkmcnt(0)"); e("s_sub_u32 s65, s66, s60"); e("s_cmp_lt_u32 s65, s64"); e("s_cbranch_scc1 L_dly")
    if opt.stamps:
        e("s_waitcnt vmcnt(0)")
        g.stamp()
        e("s_memrealtime s[48:49]")
        e("s_waitcnt lgkmcnt(0)")
        e(f"s_lshl_b32 s36, s2, 3"); e(f"s_add_u32 s36, s36, s{sWID}"); e("s_lshl_b32 s36, s36, 7")
        e("v_mov_b32 v4, s36")
        e("v_cmp_eq_u32 vcc, 0, v2"); e("s_and_saveexec_b64 s[40:41], vcc")
        e("v_mov_b32 v6, s46"); e("global_store_dword v4, v6, s[44:45] offset:0")
        e("v_mov_b32 v6, s48"); e("global_store_dword v4, v6, s[44:45] offset:4")
        for i in range(1, g.nstamp):
            e(f"s_sub_u32 s36, s{50+2*i}, s50"); e("v_mov_b32 v6, s36"); e(f"global_store_dword v4, v6, s[44:45] offset:{4+4*i}")
        e("s_waitcnt vmcnt(0)")
    g.lab("L_end")
    e("s_endpgm")
    g.lab("L_redo")
    e("s_barrier")
    e(f"s_mov_b32 s{sREDO}, 1")
    e(f"v_and_b32 v4, 31, v{vB}"); e(f"v_lshrrev_b32 v6, 5, v{vB}")
    e(f"v_lshlrev_b32 v4, 8, v4"); e(f"v_lshl_add_u32 v4, v6, 4, v4")
    e(f"v_mov_b32 v{vM}, 0xff800000")
    e(f"s_mov_b32 s{sT2}, s{sKVOFF}")
    e(f"s_add_u32 s39, s{sKVOFF}, 131072")
    g.lab("L_redo_loop")
    e("s_waitcnt vmcnt(0)")
    for s in range(8):
        e(f"buffer_load_dwordx4 v[{vK+4*s}:{vK+4*s+3}], v4, s[{sKSRD}:{sKSRD+3}], s{sT2} offen offset:{32*s}")
    e("s_waitcnt vmcnt(0)")
    for s in range(8): e(qk(0, s))
    e("s_nop 15"); e("s_nop 7")
    for i in range(0, 16, 2):
        e(f"v_max3_f32 v{vM}, v{vM}, v{S0+i}, v{S0+i+1}")
    e(f"s_add_u32 s{sT2}, s{sT2}, 8192")
    e(f"s_cmp_lt_u32 s{sT2}, s39")
    e("s_cbranch_scc1 L_redo_loop")
    e(f"v_mov_b32 v4, v{vM}")
    e("s_nop 1")
    e(f"v_permlane32_swap_b32 v{vM}, v4")
    e(f"v_max_f32 v{vM}, v{vM}, v4")
    e("s_branch L_restart")
    g.L.append('.section .rodata,"a"'); g.L.append(".p2align 6"); g.L.append(f".amdhsa_kernel {KNAME}")
    for l in [f".amdhsa_next_free_vgpr {NV}", ".amdhsa_next_free_sgpr 102", f".amdhsa_accum_offset {NV}", ".amdhsa_group_segment_fixed_size 0",
              ".amdhsa_kernarg_size 48", ".amdhsa_user_sgpr_count 2", ".amdhsa_user_sgpr_kernarg_segment_ptr 1", ".amdhsa_system_sgpr_workgroup_id_x 1"]:
        g.L.append("  " + l)
    g.L.append(".end_amdhsa_kernel")
    return "\n".join(g.L) + "\n"

if __name__ == "__main__":
    ap = argparse.ArgumentParser()
    ap.add_argument("-o", default="standalone__gqa_softmax__near_ridge.s")
    ap.add_argument("--dist", type=int, default=2)
    ap.add_argument("--stamps", action="store_true")
    ap.add_argument("--probe", type=int, default=None)
    ap.add_argument("--probemul", type=int, default=1)
    ap.add_argument("--ldflag", default="")
    ap.add_argument("--qflag", default="")
    ap.add_argument("--stflag", default="")
    opt = ap.parse_args()
    open(opt.o, "w").write(build(opt))
```

```python
import sys, math, argparse

KNAME = "standalone__gqa_softmax__near_ridge_kernel"
C_SCALE = (128 ** -0.5) * math.log2(math.e)
import struct
def f32bits(x): return struct.unpack("<I", struct.pack("<f", x))[0]

class Gen:
    def __init__(self, opt):
        self.o = opt
        self.L = []
        self.vm = []
        self.nstamp = 0
    def e(self, s): self.L.append("    " + s)
    def lab(self, s): self.L.append(s + ":")
    def c(self, s): self.L.append("    ; " + s)
    def vm_issue(self, tag): self.vm.append(tag)
    def vm_wait(self, tags):
        last = max(i for i, t in enumerate(self.vm) if t in tags)
        n = len(self.vm) - 1 - last
        self.e(f"s_waitcnt vmcnt({n})")
    def stamp(self):
        if self.o.probe is not None:
            i = self.nstamp; self.nstamp += 1
            if i == 0: self.e("s_memrealtime s[60:61]")
            if i == self.o.probe: self.e("s_memrealtime s[62:63]")
            return
        if not self.o.stamps: return
        i = self.nstamp; self.nstamp += 1
        assert i < 24
        self.e(f"{'s_memrealtime' if self.o.rt else 's_memtime'} s[{50+2*i}:{51+2*i}]")

def build(opt):
    g = Gen(opt); e = g.e
    D = opt.dist
    RK = D + 1; RV = D + 1
    KBASE = 0; VBASE = RK * 16384
    STG = (RK + RV) * 16384
    lds_bytes = STG + 65536
    assert lds_bytes <= 163840
    FLAG_OFF = 0
    ldflag = opt.ldflag; qflag = opt.qflag; stflag = opt.stflag
    sKSRD, sVSRD, sQSRD, sOSRD = 8, 12, 16, 20
    sW2K = 24
    sKVOFF = 25
    sQOFF = 26
    sC = 27
    sREDO = 28
    sTMP = 29
    sWID = 30
    sT2 = 31
    vQ = 8
    vO = 40
    vS = [104, 120]
    vP = [136, 144]
    vK = 152
    vV = 184
    vX = [216, 217]
    vT = [218, 219, 220, 221]
    vL = 222; vMC = 223; vM = 224
    vKA = 226
    vVA = 234
    vDK = [238, 239]
    vDV = 240
    vQO = 241
    vOW = 243
    vOR = 244
    sSTG = 39
    vA, vB, vC_ = 1, 2, 3
    NV = 248

    g.L.append(f"; @launch grid=(256,1,1) block=(512,1,1) lds={lds_bytes}")
    g.L.append('.amdgcn_target "amdgcn-amd-amdhsa--gfx950"')
    g.L.append(".text"); g.L.append(f".globl {KNAME}"); g.L.append(".p2align 8"); g.L.append(f".type {KNAME},@function")
    g.lab(KNAME)
    g.stamp()
    if opt.stamps: e("s_memrealtime s[46:47]")
    e("s_cmp_ge_u32 s2, 256")
    e("s_cbranch_scc1 L_end")
    e("s_load_dwordx4 s[4:7], s[0:1], 0")
    e("s_load_dwordx4 s[32:35], s[0:1], 16")
    if opt.stamps: e("s_load_dwordx2 s[44:45], s[0:1], 40")
    e(f"v_lshrrev_b32 v{vA}, 6, v0")
    e(f"v_and_b32 v{vB}, 63, v0")
    e(f"v_readfirstlane_b32 s{sWID}, v{vA}")
    e("s_and_b32 s36, s2, 7")
    e("s_lshr_b32 s37, s2, 3")
    e("s_lshl_b32 s38, s36, 5")
    e("s_add_u32 s38, s38, s37")
    e(f"s_lshl_b32 s{sQOFF}, s38, 16")
    e("s_lshl_b32 s38, s36, 3")
    e("s_lshr_b32 s37, s37, 2")
    e("s_add_u32 s38, s38, s37")
    e(f"s_lshl_b32 s{sKVOFF}, s38, 17")
    e(f"s_mov_b32 s{sREDO}, 0")
    e(f"s_mov_b32 s{sC}, 0x{f32bits(C_SCALE):08x}")
    e(f"s_lshl_b32 s{sW2K}, s{sWID}, 11")
    e(f"v_lshrrev_b32 v{vC_}, 4, v{vB}")
    e(f"v_and_b32 v4, 15, v{vB}")
    e(f"v_lshlrev_b32 v5, 3, v{vA}")
    e(f"v_add_u32 v5, v5, v{vC_}")
    e(f"v_and_b32 v6, 15, v5")
    e(f"v_xor_b32 v6, v6, v4")
    e(f"v_lshlrev_b32 v5, 8, v5")
    e(f"v_lshl_add_u32 v{vDK[0]}, v6, 4, v5")
    e(f"v_xor_b32 v{vDK[1]}, 64, v{vDK[0]}")
    e(f"v_lshlrev_b32 v6, 2, v{vC_}")
    e(f"v_xor_b32 v6, v6, v4")
    e(f"v_lshl_add_u32 v{vDV}, v6, 4, v5")
    e(f"v_lshl_add_u32 v5, v{vA}, 5, v{vC_}")
    e(f"v_lshlrev_b32 v5, 8, v5")
    e(f"v_xor_b32 v6, v{vC_}, v4")
    e(f"v_lshl_add_u32 v{vQO}, v6, 4, v5")
    e(f"s_lshl_b32 s{sSTG}, s{sWID}, 13")
    e(f"s_add_u32 s{sSTG}, s{sSTG}, {STG}")
    e("s_waitcnt lgkmcnt(0)")
    def srd(d, p, n):
        e(f"s_mov_b32 s{d}, s{p}"); e(f"s_and_b32 s{d+1}, s{p+1}, 0xffff"); e(f"s_mov_b32 s{d+2}, {n}"); e(f"s_mov_b32 s{d+3}, 0x20000")
    srd(sKSRD, 6, 8388608); srd(sQSRD, 4, 16777216); srd(sVSRD, 32, 8388608); srd(sOSRD, 34, 16777216)
    g.lab("L_restart")
    g.vm = []
    def dma(kind, t):
        base = (KBASE + (t % RK) * 16384) if kind == "K" else (VBASE + (t % RV) * 16384)
        srdn = sKSRD if kind == "K" else sVSRD
        out = []
        out.append(f"s_add_u32 m0, s{sW2K}, {base}")
        out.append(f"s_add_u32 s{sTMP}, s{sKVOFF}, {t*16384}")
        for p in range(2):
            va = vDK[p] if kind == "K" else vDV
            out.append((f"buffer_load_dwordx4 v{va}, s[{srdn}:{srdn+3}], s{sTMP} offen offset:{1024*p} {ldflag} lds", f"{kind}{t}"))
        return out
    def emit_list(lst):
        for x in lst:
            if isinstance(x, tuple):
                e(x[0]); g.vm_issue(x[1])
            else: e(x)
    emit_list(dma("K", 0))
    for i in range(1, 4): e(f"v_xor_b32 v{vK+i}, {64*i}, v{vQO}")
    for half in range(2):
        e(f"s_add_u32 m0, s{sSTG}, {4096*half}")
        e(f"s_add_u32 s{sTMP}, s{sQOFF}, {4096*half}")
        for i in range(4):
            va = vQO if i == 0 else vK + i
            e(f"buffer_load_dwordx4 v{va}, s[{sQSRD}:{sQSRD+3}], s{sTMP} offen offset:{1024*i} {qflag} lds"); g.vm_issue(f"Q{4*half+i}")
    issued = [("K", 0)]
    order = []
    for t in range(8):
        order.append(("V", t))
        if t + 1 < 8: order.append(("K", t + 1))
    init = [x for x in order if (x[0] == "K" and x[1] <= D - 1) or (x[0] == "V" and x[1] <= D - 2)]
    for x in init: emit_list(dma(*x))
    e(f"v_and_b32 v4, 31, v{vB}")
    e(f"v_lshrrev_b32 v6, 5, v{vB}")
    e(f"v_and_b32 v5, 15, v4")
    e(f"v_xor_b32 v5, v5, v6")
    e(f"v_lshlrev_b32 v5, 4, v5")
    e(f"v_lshl_add_u32 v{vKA}, v4, 8, v5")
    for s in range(1, 8):
        e(f"v_xor_b32 v{vKA+s}, {32*s}, v{vKA}")
    e(f"v_bfe_u32 v4, v{vB}, 2, 2")
    e(f"v_lshl_add_u32 v5, v6, 2, v4")
    e(f"v_lshlrev_b32 v5, 8, v5")
    e(f"v_lshl_add_u32 v5, v4, 6, v5")
    e(f"v_bfe_u32 v4, v{vB}, 4, 1")
    e(f"v_lshl_add_u32 v5, v4, 5, v5")
    e(f"v_and_b32 v4, 3, v{vB}")
    e(f"v_lshl_add_u32 v5, v4, 3, v5")
    e(f"v_add_u32 v{vVA}, {VBASE}, v5")
    for db in range(1, 4):
        e(f"v_xor_b32 v{vVA+db}, {64*db}, v{vVA}")
    e(f"v_mov_b32 v{vL}, 0")
    e(f"v_lshlrev_b32 v{vOR}, 4, v{vB}")
    e(f"v_add_u32 v{vOR}, s{sSTG}, v{vOR}")
    e(f"v_and_b32 v4, 31, v{vB}")
    e(f"v_lshlrev_b32 v5, 8, v4")
    e(f"v_lshl_add_u32 v5, v6, 3, v5")
    e(f"v_and_b32 v4, 7, v4")
    e(f"v_lshl_add_u32 v5, v4, 4, v5")
    e(f"v_add_u32 v{vOW}, s{sSTG}, v5")

    def kread(n, s):
        t, blk = n >> 1, n & 1
        off = KBASE + (t % RK) * 16384 + blk * 8192
        return f"ds_read_b128 v[{vK+4*s}:{vK+4*s+3}], v{vKA+s} offset:{off}"
    def vread(n, f, h):
        t, blk = n >> 1, n & 1
        j, db = (f >> 2, f & 3)
        off = (t % RV) * 16384 + (blk * 32 + 16 * j + 8 * h) * 256
        return f"ds_read_b64_tr_b16 v[{vV+4*f+2*h}:{vV+4*f+2*h+1}], v{vVA+db} offset:{off}"
    def qk(n, s):
        S = vS[n & 1]
        cin = "0" if s == 0 else f"v[{S}:{S+15}]"
        return f"v_mfma_f32_32x32x16_bf16 v[{S}:{S+15}], v[{vK+4*s}:{vK+4*s+3}], v[{vQ+4*s}:{vQ+4*s+3}], {cin}"
    def pv(n, f):
        j, db = (f >> 2, f & 3)
        O = vO + 16 * db; P = vP[n & 1] + 4 * j
        cin = "0" if (n == 0 and j == 0) else f"v[{O}:{O+15}]"
        return f"v_mfma_f32_32x32x16_bf16 v[{O}:{O+15}], v[{vV+4*f}:{vV+4*f+3}], v[{P}:{P+3}], {cin}"
    def fma(n, i): return f"v_fma_f32 v{vX[i&1]}, v{vS[n&1]+i}, s{sC}, -v{vMC}"
    def exp(n, i): return f"v_exp_f32 v{vT[i&3]}, v{vX[i&1]}"
    def add(n, i): return f"v_add_f32 v{vL}, v{vL}, v{vT[i&3]}"
    def cvt(n, i): return f"v_cvt_pk_bf16_f32 v{vP[n&1]+(i>>1)}, v{vT[i&3]}, v{vT[(i+1)&3]}"

    def barrier_point(t):
        tags = set()
        if t <= 7: tags.add(f"K{t}")
        if t >= 1: tags.add(f"V{t-1}")
        g.vm_wait(tags)
        e("s_waitcnt lgkmcnt(0)")
        e("s_barrier")
    def after_P(t):
        out = []
        if t + D - 1 <= 7 and t + D - 1 >= 0: out += dma("V", t + D - 1)
        if t + D <= 7: out += dma("K", t + D)
        return out

    g.stamp()
    barrier_point(0)
    g.stamp()
    for s in range(8): e(kread(0, s))
    emit_list(after_P(0))
    for s in range(8): e(f"v_add_u32 v{vV+s}, s{sSTG}, v{vKA+s}")
    g.vm_wait({"Q7"})
    for s in range(8): e(f"ds_read_b128 v[{vQ+4*s}:{vQ+4*s+3}], v{vV+s}")
    e("s_waitcnt lgkmcnt(0)")
    g.stamp()
    for s in range(8):
        e(qk(0, s)); e(kread(1, s))
    S0 = vS[0]
    e("s_waitcnt lgkmcnt(4)")
    e(qk(1, 0)); e(qk(1, 1)); e(qk(1, 2)); e(qk(1, 3))
    e("s_waitcnt lgkmcnt(0)")
    e("s_nop 4")
    e(f"s_cmp_lg_u32 s{sREDO}, 0")
    e("s_cbranch_scc1 L_have_m")
    e(f"v_max3_f32 v{vM}, v{S0}, v{S0+1}, v{S0+2}")
    for i in range(3, 15, 2):
        e(f"v_max3_f32 v{vM}, v{vM}, v{S0+i}, v{S0+i+1}")
    e(f"v_max_f32 v{vM}, v{vM}, v{S0+15}")
    e(f"v_mov_b32 v4, v{vM}")
    e("s_nop 1")
    e(f"v_permlane32_swap_b32 v{vM}, v4")
    e(f"v_max_f32 v{vM}, v{vM}, v4")
    g.lab("L_have_m")
    e(f"v_mul_f32 v{vMC}, s{sC}, v{vM}")
    e(qk(1, 4))
    e(fma(0, 0))

    def valu(n, gi):
        out = [exp(n, gi)]
        out.append(fma(n, gi + 1) if gi < 15 else (fma(n + 1, 0) if n < 15 else None))
        if gi >= 1: out.append(add(n, gi - 1))
        elif n >= 1: out.append(add(n - 1, 15))
        if gi % 2 == 0:
            if gi >= 2: out.append(cvt(n, gi - 2))
            elif n >= 1: out.append(cvt(n - 1, 14))
        return [x for x in out if x]

    mf = [qk(1, 5), qk(1, 6), qk(1, 7)]
    for gi in range(8):
        if mf: e(mf.pop(0))
        for x in valu(0, gi): e(x)
    barrier_point(1)
    extra = after_P(1)
    for gi in range(8, 16):
        e(kread(2, gi - 8))
        for x in valu(0, gi): e(x)
        if extra: emit_list([extra.pop(0)])
    emit_list(extra)
    g.stamp()
    for n in range(1, 15):
        extra = []
        for gi in range(16):
            if gi == 0: e("s_waitcnt lgkmcnt(4)")
            if gi == 4: e("s_waitcnt lgkmcnt(8)")
            if gi == 8:
                if n % 2 == 0:
                    t = n // 2 + 1
                    barrier_point(t)
                    extra = after_P(t)
                else:
                    e("s_waitcnt lgkmcnt(8)")
            if gi == 12 and n % 2 == 1: e("s_waitcnt lgkmcnt(4)")
            if gi < 8:
                e(qk(n + 1, gi)); e(vread(n - 1, gi, 0)); e(vread(n - 1, gi, 1))
            else:
                e(pv(n - 1, gi - 8))
                if n < 14: e(kread(n + 2, gi - 8))
                else:
                    e(vread(14, gi - 8, 0)); e(vread(14, gi - 8, 1))
            for x in valu(n, gi): e(x)
            if gi >= 8 and extra: emit_list([extra.pop(0)])
        emit_list(extra)
        if n % 2 == 0: g.stamp()
    for gi in range(16):
        if gi % 2 == 0:
            f = gi // 2
            if f == 0: e("s_waitcnt lgkmcnt(8)")
            if f == 4: e("s_waitcnt lgkmcnt(8)")
            e(pv(14, f)); e(vread(15, f, 0)); e(vread(15, f, 1))
        for x in valu(15, gi): e(x)
    e(add(15, 15)); e(cvt(15, 14))
    g.stamp()
    e("s_waitcnt lgkmcnt(0)")
    e(pv(15, 0))
    e(f"v_mov_b32 v4, v{vL}")
    e(pv(15, 4))
    e("s_nop 0")
    e(f"v_permlane32_swap_b32 v{vL}, v4")
    e(pv(15, 1))
    e(f"v_add_f32 v{vL}, v{vL}, v4")
    e(f"v_rcp_f32 v5, v{vL}")
    e(pv(15, 5))
    e(f"s_mov_b32 s{sTMP}, 0x{f32bits(2.0**30):08x}")
    e(f"v_cmp_nle_f32 vcc, v{vL}, s{sTMP}" if False else f"v_cmp_nge_f32 vcc, s{sTMP}, v{vL}")
    e(pv(15, 2)); e(pv(15, 6))
    def norm(db):
        O = vO + 16 * db
        R = vK + 8 * db
        for i in range(16): e(f"v_mul_f32 v{O+i}, v5, v{O+i}")
        for i in range(8): e(f"v_cvt_pk_bf16_f32 v{R+i}, v{O+2*i}, v{O+2*i+1}")
        for gq in range(4):
            ch = 4 * db + gq
            e(f"ds_write_b64 v{vKA+(ch&7)}, v[{R+2*gq}:{R+2*gq+1}] offset:{128*(ch>>3)}")
    e(pv(15, 3))
    e(f"v_mov_b32 v{vKA}, v{vOW}")
    for i in range(1, 8): e(f"v_xor_b32 v{vKA+i}, {16*i}, v{vOW}")
    e(pv(15, 7))
    e(f"v_lshrrev_b32 v4, 4, v{vB}")
    e(f"v_and_b32 v6, 15, v{vB}")
    e(f"v_xor_b32 v6, v6, v4")
    e(f"v_lshl_add_u32 v4, v{vA}, 5, v4")
    e(f"v_lshlrev_b32 v4, 8, v4")
    e(f"v_lshl_add_u32 v{vVA}, v6, 4, v4")
    e(f"v_xor_b32 v{vVA+1}, 64, v{vVA}")
    e(f"s_add_u32 s{sT2}, s{sQOFF}, 4096")
    norm(0); norm(1); norm(2); norm(3)
    e("s_waitcnt lgkmcnt(0)")
    for i in range(8): e(f"ds_read_b128 v[{vV+4*i}:{vV+4*i+3}], v{vOR} offset:{1024*i}")
    for i in range(8):
        e(f"s_waitcnt lgkmcnt({7-i})")
        so = sQOFF if i < 4 else sT2
        e(f"buffer_store_dwordx4 v[{vV+4*i}:{vV+4*i+3}], v{vVA+(i&1)}, s[{sOSRD}:{sOSRD+3}], s{so} offen offset:{1024*(i&3)} {stflag}")
    g.stamp()
    e("s_cmp_lg_u64 vcc, 0")
    e(f"s_cselect_b32 s{sTMP}, 1, 0")
    e(f"s_lshl_b32 s{sT2}, s{sWID}, 2")
    e(f"v_mov_b32 v4, s{sT2}")
    e(f"v_mov_b32 v6, s{sTMP}")
    e(f"ds_write_b32 v4, v6 offset:{FLAG_OFF}")
    e("s_waitcnt lgkmcnt(0)")
    e("s_barrier")
    e(f"v_and_b32 v4, 7, v{vB}")
    e("v_lshlrev_b32 v4, 2, v4")
    e(f"ds_read_b32 v6, v4 offset:{FLAG_OFF}")
    e("s_waitcnt lgkmcnt(0)")
    e("v_cmp_ne_u32 vcc, 0, v6")
    e(f"s_cmp_lg_u32 s{sREDO}, 0")
    e("s_cbranch_scc1 L_fin")
    e("s_cbranch_vccnz L_redo")
    g.lab("L_fin")
    if opt.probe is not None:
        e("s_waitcnt vmcnt(0)")
        g.stamp()
        e("s_waitcnt lgkmcnt(0)")
        e("s_sub_u32 s64, s62, s60")
        e(f"s_mul_i32 s64, s64, {opt.probemul}")
        e("s_add_u32 s64, s64, 6000")
        g.lab("L_dly")
        e("s_sleep 2")
        e("s_memrealtime s[66:67]"); e("s_waitcnt lgkmcnt(0)"); e("s_sub_u32 s65, s66, s60"); e("s_cmp_lt_u32 s65, s64"); e("s_cbranch_scc1 L_dly")
    if opt.stamps:
        e("s_waitcnt vmcnt(0)")
        g.stamp()
        e("s_memrealtime s[48:49]")
        e("s_waitcnt lgkmcnt(0)")
        e(f"s_lshl_b32 s36, s2, 3"); e(f"s_add_u32 s36, s36, s{sWID}"); e("s_lshl_b32 s36, s36, 7")
        e("v_mov_b32 v4, s36")
        e("v_cmp_eq_u32 vcc, 0, v2"); e("s_and_saveexec_b64 s[40:41], vcc")
        e("v_mov_b32 v6, s46"); e("global_store_dword v4, v6, s[44:45] offset:0")
        e("v_mov_b32 v6, s48"); e("global_store_dword v4, v6, s[44:45] offset:4")
        for i in range(1, g.nstamp):
            e(f"s_sub_u32 s36, s{50+2*i}, s50"); e("v_mov_b32 v6, s36"); e(f"global_store_dword v4, v6, s[44:45] offset:{4+4*i}")
        e("s_waitcnt vmcnt(0)")
    g.lab("L_end")
    e("s_endpgm")
    g.lab("L_redo")
    e("s_barrier")
    e(f"s_mov_b32 s{sREDO}, 1")
    e(f"v_and_b32 v4, 31, v{vB}"); e(f"v_lshrrev_b32 v6, 5, v{vB}")
    e(f"v_lshlrev_b32 v4, 8, v4"); e(f"v_lshl_add_u32 v4, v6, 4, v4")
    e(f"v_mov_b32 v{vM}, 0xff800000")
    e(f"s_mov_b32 s{sT2}, s{sKVOFF}")
    e(f"s_add_u32 s38, s{sKVOFF}, 131072")
    g.lab("L_redo_loop")
    e("s_waitcnt vmcnt(0)")
    for s in range(8):
        e(f"buffer_load_dwordx4 v[{vK+4*s}:{vK+4*s+3}], v4, s[{sKSRD}:{sKSRD+3}], s{sT2} offen offset:{32*s}")
    e("s_waitcnt vmcnt(0)")
    for s in range(8): e(qk(0, s))
    e("s_nop 15"); e("s_nop 7")
    for i in range(0, 16, 2):
        e(f"v_max3_f32 v{vM}, v{vM}, v{S0+i}, v{S0+i+1}")
    e(f"s_add_u32 s{sT2}, s{sT2}, 8192")
    e(f"s_cmp_lt_u32 s{sT2}, s38")
    e("s_cbranch_scc1 L_redo_loop")
    e(f"v_mov_b32 v4, v{vM}")
    e("s_nop 1")
    e(f"v_permlane32_swap_b32 v{vM}, v4")
    e(f"v_max_f32 v{vM}, v{vM}, v4")
    e("s_branch L_restart")
    g.L.append('.section .rodata,"a"'); g.L.append(".p2align 6"); g.L.append(f".amdhsa_kernel {KNAME}")
    for l in [f".amdhsa_next_free_vgpr {NV}", ".amdhsa_next_free_sgpr 102", f".amdhsa_accum_offset {NV}", ".amdhsa_group_segment_fixed_size 0",
              ".amdhsa_kernarg_size 48", ".amdhsa_user_sgpr_count 2", ".amdhsa_user_sgpr_kernarg_segment_ptr 1", ".amdhsa_system_sgpr_workgroup_id_x 1"]:
        g.L.append("  " + l)
    g.L.append(".end_amdhsa_kernel")
    g.L.append(f"; nstamp={g.nstamp}")
    return "\n".join(g.L) + "\n"

if __name__ == "__main__":
    ap = argparse.ArgumentParser()
    ap.add_argument("-o", default="standalone__gqa_softmax__near_ridge.s")
    ap.add_argument("--dist", type=int, default=2)
    ap.add_argument("--stamps", action="store_true")
    ap.add_argument("--probe", type=int, default=None)
    ap.add_argument("--probemul", type=int, default=1)
    ap.add_argument("--rt", action="store_true")
    ap.add_argument("--ldflag", default="")
    ap.add_argument("--qflag", default="")
    ap.add_argument("--stflag", default="")
    opt = ap.parse_args()
    open(opt.o, "w").write(build(opt))
```

```python
import sys, math, argparse, struct

KNAME = "standalone__gqa_softmax__near_ridge_kernel"
C_SCALE = (128 ** -0.5) * math.log2(math.e)
def f32bits(x): return struct.unpack("<I", struct.pack("<f", x))[0]

class Gen:
    def __init__(self, opt):
        self.o = opt; self.L = []; self.vm = []; self.nstamp = 0; self.nlab = 0
    def e(self, s): self.L.append("    " + s)
    def lab(self, s): self.L.append(s + ":")
    def newlab(self, p="L"):
        self.nlab += 1; return f"{p}_{self.nlab}"
    def vm_issue(self, tag): self.vm.append(tag)
    def vm_wait(self, tags):
        last = max(i for i, t in enumerate(self.vm) if t in tags)
        for t in tags: assert t in self.vm, t
        self.e(f"s_waitcnt vmcnt({len(self.vm) - 1 - last})")
    def stamp(self):
        if self.o.probe is not None:
            i = self.nstamp; self.nstamp += 1
            if i == 0: self.e("s_memrealtime s[60:61]")
            if i == self.o.probe: self.e("s_memrealtime s[62:63]")
            return
        if not self.o.stamps: return
        i = self.nstamp; self.nstamp += 1
        assert i < 24
        self.e(f"{'s_memrealtime' if self.o.rt else 's_memtime'} s[{50+2*i}:{51+2*i}]")

def build(opt):
    g = Gen(opt); e = g.e
    n_skew = opt.skew
    R = 5
    KBASE = 0; VBASE = R * 16384
    lds_bytes = 163840
    FLAG_OFF = 0
    ldflag = opt.ldflag; qflag = opt.qflag; stflag = opt.stflag
    sched = {j: [] for j in range(-1, 9)}
    for tok in opt.sched.split():
        j, lst = tok.split(":")
        for x in lst.split(","): sched[int(j)].append((x[0], int(x[1:])))
    when = {x: j for j in sched for x in sched[j]}
    for t in range(8):
        if t > 0:
            assert when[("K", t)] < t
            if t >= 5: assert when[("K", t)] >= t - 4 + n_skew, ("K", t)
            if t in (3, 4): assert when[("K", t)] >= 1
        assert when[("V", t)] < t + 1
        if t >= 5: assert when[("V", t)] >= t - 3 + n_skew, ("V", t)
        if t in (3, 4): assert when[("V", t)] >= n_skew
    sKSRD, sVSRD, sQSRD, sOSRD = 8, 12, 16, 20
    sW4K = 24; sKVOFF = 25; sQOFF = 26; sC = 27; sREDO = 28; sTMP = 29; sWID = 30; sT2 = 31; sSTG = 39; sISB = 40
    vQ = 8; vO = 40; vS = [104, 120]; vP = [136, 144]; vK = 152; vV = 184
    vX = [216, 217]; vT = [218, 219, 220, 221]; vL = 222; vMC = 223; vM = 224
    if opt.latecvt:
        vT = [144,145,146,147,148,149,150,151,218,219,220,221,248,249,250,251]; vP = [136, 136]
    vKA = 226; vVA = 234
    vDK = 238
    vDV = 242; vQO = 243; vOW = 244; vOR = 245; vOS = 246
    vA, vB, vC_ = 1, 2, 3
    NV = 252 if opt.latecvt else 248
    NT = len(vT)

    g.L.append(f"; @launch grid=(256,1,1) block=(512,1,1) lds={lds_bytes}")
    g.L.append('.amdgcn_target "amdgcn-amd-amdhsa--gfx950"')
    g.L.append(".text"); g.L.append(f".globl {KNAME}"); g.L.append(".p2align 8"); g.L.append(f".type {KNAME},@function")
    g.lab(KNAME)
    e("s_load_dwordx4 s[4:7], s[0:1], 0")
    e("s_load_dwordx4 s[32:35], s[0:1], 16")
    g.stamp()
    if opt.stamps: e("s_memrealtime s[46:47]"); e("s_load_dwordx2 s[44:45], s[0:1], 40")
    e("s_cmp_ge_u32 s2, 256")
    e("s_cbranch_scc1 L_end")
    e(f"v_lshrrev_b32 v{vA}, 6, v0")
    e(f"v_and_b32 v{vB}, 63, v0")
    e(f"v_readfirstlane_b32 s{sWID}, v{vA}")
    e("s_and_b32 s36, s2, 7")
    e("s_lshr_b32 s37, s2, 3")
    e("s_lshl_b32 s38, s36, 5")
    e("s_add_u32 s38, s38, s37")
    e(f"s_lshl_b32 s{sQOFF}, s38, 16")
    e("s_lshl_b32 s38, s36, 3")
    e("s_lshr_b32 s37, s37, 2")
    e("s_add_u32 s38, s38, s37")
    e(f"s_lshl_b32 s{sKVOFF}, s38, 17")
    e(f"s_mov_b32 s{sREDO}, 0")
    e(f"s_mov_b32 s{sC}, 0x{f32bits(C_SCALE):08x}")
    e(f"s_lshl_b32 s{sW4K}, s{sWID}, 12")
    e(f"s_lshr_b32 s{sISB}, s{sWID}, 2")
    e(f"s_lshl_b32 s{sSTG}, s{sWID}, 13")
    e(f"s_mul_i32 s{sTMP}, s{sISB}, {VBASE - 32768}")
    e(f"s_add_u32 s{sSTG}, s{sSTG}, s{sTMP}")
    e(f"s_add_u32 s{sSTG}, s{sSTG}, {3*16384}")
    e(f"v_lshrrev_b32 v{vC_}, 4, v{vB}")
    e(f"v_and_b32 v4, 15, v{vB}")
    e(f"v_xor_b32 v6, v{vC_}, v4")
    e(f"v_lshl_add_u32 v5, v{vA}, 4, v{vC_}")
    e(f"v_lshlrev_b32 v5, 8, v5")
    e(f"v_lshl_add_u32 v{vDK}, v6, 4, v5")
    for p in range(1, 4): e(f"v_xor_b32 v{vDK+p}, {64*p}, v{vDK}")
    e(f"v_lshl_add_u32 v7, v{vA}, 5, v{vC_}")
    e(f"v_lshlrev_b32 v7, 8, v7")
    e(f"v_lshl_add_u32 v{vQO}, v6, 4, v7")
    e(f"v_lshlrev_b32 v6, 2, v{vC_}")
    e(f"v_xor_b32 v6, v6, v4")
    e(f"v_lshl_add_u32 v{vDV}, v6, 4, v5")
    e("s_waitcnt lgkmcnt(0)")
    def srd(d, p, n):
        e(f"s_mov_b32 s{d}, s{p}"); e(f"s_and_b32 s{d+1}, s{p+1}, 0xffff"); e(f"s_mov_b32 s{d+2}, {n}"); e(f"s_mov_b32 s{d+3}, 0x20000")
    srd(sKSRD, 6, 8388608); srd(sQSRD, 4, 16777216); srd(sVSRD, 32, 8388608); srd(sOSRD, 34, 16777216)
    g.lab("L_restart")
    g.vm = []
    def dma(kind, t):
        base = (KBASE if kind == "K" else VBASE) + (t % R) * 16384
        srdn = sKSRD if kind == "K" else sVSRD
        out = [f"s_add_u32 m0, s{sW4K}, {base}", f"s_add_u32 s{sTMP}, s{sKVOFF}, {t*16384}"]
        for p in range(4):
            va = vDK + p if kind == "K" else vDV
            out.append((f"buffer_load_dwordx4 v{va}, s[{srdn}:{srdn+3}], s{sTMP} offen offset:{1024*p} {ldflag} lds", f"{kind}{t}"))
        return out
    def emit_list(lst):
        for x in lst:
            if isinstance(x, tuple): e(x[0]); g.vm_issue(x[1])
            else: e(x)
    def qdma(track):
        for i in range(1, 4): e(f"v_xor_b32 v{vK+i}, {64*i}, v{vQO}")
        for half in range(2):
            e(f"s_add_u32 m0, s{sSTG}, {4096*half}")
            e(f"s_add_u32 s{sTMP}, s{sQOFF}, {4096*half}")
            for i in range(4):
                va = vQO if i == 0 else vK + i
                e(f"buffer_load_dwordx4 v{va}, s[{sQSRD}:{sQSRD+3}], s{sTMP} offen offset:{1024*i} {qflag} lds")
                if track: g.vm_issue(f"Q{4*half+i}")
    def addrs():
        e(f"v_and_b32 v4, 31, v{vB}")
        e(f"v_lshrrev_b32 v6, 5, v{vB}")
        e(f"v_and_b32 v5, 15, v4")
        e(f"v_xor_b32 v5, v5, v6")
        e(f"v_lshlrev_b32 v5, 4, v5")
        e(f"v_lshl_add_u32 v{vKA}, v4, 8, v5")
        for s in range(1, 8): e(f"v_xor_b32 v{vKA+s}, {32*s}, v{vKA}")
        e(f"v_bfe_u32 v4, v{vB}, 2, 2")
        e(f"v_lshl_add_u32 v5, v6, 2, v4")
        e(f"v_lshlrev_b32 v5, 8, v5")
        e(f"v_lshl_add_u32 v5, v4, 6, v5")
        e(f"v_bfe_u32 v4, v{vB}, 4, 1")
        e(f"v_lshl_add_u32 v5, v4, 5, v5")
        e(f"v_and_b32 v4, 3, v{vB}")
        e(f"v_lshl_add_u32 v5, v4, 3, v5")
        e(f"v_add_u32 v{vVA}, {VBASE}, v5")
        for db in range(1, 4): e(f"v_xor_b32 v{vVA+db}, {64*db}, v{vVA}")
        e(f"v_mov_b32 v{vL}, 0")
        e(f"v_lshlrev_b32 v{vOR}, 4, v{vB}")
        e(f"v_add_u32 v{vOR}, s{sSTG}, v{vOR}")
        e(f"v_and_b32 v4, 31, v{vB}")
        e(f"v_lshlrev_b32 v5, 7, v4")
        e(f"v_lshl_add_u32 v5, v6, 3, v5")
        e(f"v_and_b32 v4, 7, v4")
        e(f"v_lshl_add_u32 v5, v4, 4, v5")
        e(f"v_add_u32 v{vOW}, s{sSTG}, v5")
        e(f"v_lshrrev_b32 v4, 3, v{vB}")
        e(f"v_and_b32 v5, 7, v{vB}")
        e(f"v_xor_b32 v5, v5, v4")
        e(f"v_lshl_add_u32 v4, v{vA}, 5, v4")
        e(f"v_lshlrev_b32 v4, 8, v4")
        e(f"v_lshl_add_u32 v{vOS}, v5, 4, v4")
        for s in range(8): e(f"v_add_u32 v{vV+s}, s{sSTG}, v{vKA+s}")
    def qread():
        for s in range(8): e(f"ds_read_b128 v[{vQ+4*s}:{vQ+4*s+3}], v{vV+s}")

    e(f"s_cmp_lg_u32 s{sISB}, 0")
    e("s_cbranch_scc1 L_proB")
    emit_list(dma("K", 0))
    qdma(True)
    for x in sched[-1]: emit_list(dma(*x))
    addrs()
    if opt.prio == "A": e("s_setprio 1")
    e("s_branch L_main")
    g.lab("L_proB")
    if opt.prio == "B": e("s_setprio 1")
    addrs()
    for i in range(n_skew):
        if i == opt.qb_after: qdma(False)
        e("s_barrier")
    if opt.qb_after >= n_skew: qdma(False)
    e("s_waitcnt vmcnt(0)")
    qread()
    g.lab("L_main")

    st = {"K": 0, "V": 0}
    def rebias(kind, t):
        want = 65536 if (t % R) == 4 else 0
        out = []
        if st[kind] != want:
            regs = [vKA + s for s in range(8)] if kind == "K" else [vVA + d for d in range(4)]
            for r_ in regs:
                out.append(f"v_add_u32 v{r_}, {65536 if want else -65536 & 0xffffffff}, v{r_}")
            st[kind] = want
        return out
    def kread(n, s):
        t, blk = n >> 1, n & 1
        off = KBASE + (t % R) * 16384 + blk * 8192 - st["K"]
        assert 0 <= off < 65536
        return f"ds_read_b128 v[{vK+4*s}:{vK+4*s+3}], v{vKA+s} offset:{off}"
    def vread(n, f, h):
        t, blk = n >> 1, n & 1
        j, db = (f >> 2, f & 3)
        off = (t % R) * 16384 + (blk * 32 + 16 * j + 8 * h) * 256 - st["V"]
        assert 0 <= off < 65536
        return f"ds_read_b64_tr_b16 v[{vV+4*f+2*h}:{vV+4*f+2*h+1}], v{vVA+db} offset:{off}"
    def qk(n, s):
        S = vS[n & 1]
        cin = "0" if s == 0 else f"v[{S}:{S+15}]"
        return f"v_mfma_f32_32x32x16_bf16 v[{S}:{S+15}], v[{vK+4*s}:{vK+4*s+3}], v[{vQ+4*s}:{vQ+4*s+3}], {cin}"
    def pv(n, f):
        j, db = (f >> 2, f & 3)
        O = vO + 16 * db; P = vP[n & 1] + 4 * j
        cin = "0" if (n == 0 and j == 0) else f"v[{O}:{O+15}]"
        return f"v_mfma_f32_32x32x16_bf16 v[{O}:{O+15}], v[{vV+4*f}:{vV+4*f+3}], v[{P}:{P+3}], {cin}"
    def fma(n, i): return f"v_fma_f32 v{vX[i&1]}, v{vS[n&1]+i}, s{sC}, -v{vMC}"
    def exp(n, i): return f"v_exp_f32 v{vT[i%NT]}, v{vX[i&1]}"
    def add(n, i): return f"v_add_f32 v{vL}, v{vL}, v{vT[i%NT]}"
    def cvt(n, i): return f"v_cvt_pk_bf16_f32 v{vP[n&1]+(i>>1)}, v{vT[i%NT]}, v{vT[(i+1)%NT]}"
    def barrier_point(t):
        tags = set()
        if t <= 7: tags.add(f"K{t}")
        if t >= 1: tags.add(f"V{t-1}")
        g.vm_wait(tags)
        e("s_waitcnt lgkmcnt(0)")
        e("s_barrier")
    def dma_groups(t):
        return [dma(*x) for x in sched[t]]
    def emit_dma_block(blk):
        l = g.newlab("L_nd")
        e(f"s_cmp_lg_u32 s{sISB}, 0"); e(f"s_cbranch_scc1 {l}")
        emit_list(blk)
        g.lab(l)

    g.stamp()
    if opt.p0_after_q:
        e(f"s_cmp_lg_u32 s{sISB}, 0"); e("s_cbranch_scc1 L_haveq")
        g.vm_wait({"Q7"})
        qread()
        g.lab("L_haveq")
        g.vm_wait({"K0"})
        e("s_barrier")
        g.stamp()
        for s in range(8): e(kread(0, s))
        for blk in dma_groups(0): emit_dma_block(blk)
    else:
        barrier_point(0)
        g.stamp()
        for s in range(8): e(kread(0, s))
        e(f"s_cmp_lg_u32 s{sISB}, 0"); e("s_cbranch_scc1 L_haveq")
        for blk in dma_groups(0): emit_list(blk)
        g.vm_wait({"Q7"})
        qread()
        g.lab("L_haveq")
    e("s_waitcnt lgkmcnt(0)")
    g.stamp()
    for s in range(8):
        e(qk(0, s)); e(kread(1, s))
    S0 = vS[0]
    e("s_waitcnt lgkmcnt(4)")
    e(qk(1, 0)); e(qk(1, 1)); e(qk(1, 2)); e(qk(1, 3))
    e("s_waitcnt lgkmcnt(0)")
    e("s_nop 4")
    e(f"s_cmp_lg_u32 s{sREDO}, 0")
    e("s_cbranch_scc1 L_have_m")
    e(f"v_max3_f32 v{vM}, v{S0}, v{S0+1}, v{S0+2}")
    for i in range(3, 15, 2): e(f"v_max3_f32 v{vM}, v{vM}, v{S0+i}, v{S0+i+1}")
    e(f"v_max_f32 v{vM}, v{vM}, v{S0+15}")
    e(f"v_mov_b32 v4, v{vM}")
    e("s_nop 1")
    e(f"v_permlane32_swap_b32 v{vM}, v4")
    e(f"v_max_f32 v{vM}, v{vM}, v4")
    g.lab("L_have_m")
    e(f"v_mul_f32 v{vMC}, s{sC}, v{vM}")
    e(qk(1, 4))
    e(fma(0, 0))
    def valu(n, gi):
        out = [exp(n, gi)]
        out.append(fma(n, gi + 1) if gi < 15 else (fma(n + 1, 0) if n < 15 else None))
        if gi >= 1: out.append(add(n, gi - 1))
        elif n >= 1: out.append(add(n - 1, 15))
        if opt.latecvt:
            if n >= 1 and n < 15 and gi < 8:
                out.insert(0, cvt(n - 1, 2 * gi)) if gi == 0 else out.append(cvt(n - 1, 2 * gi))
        elif gi % 2 == 0:
            if gi >= 2: out.append(cvt(n, gi - 2))
            elif n >= 1: out.append(cvt(n - 1, 14))
        return [x for x in out if x]
    mf = [qk(1, 5), qk(1, 6), qk(1, 7)]
    for gi in range(8):
        if mf: e(mf.pop(0))
        for x in valu(0, gi): e(x)
    barrier_point(1)
    extra = dma_groups(1)
    for gi in range(8, 16):
        e(kread(2, gi - 8)); e(vread(0, gi - 8, 0)); e(vread(0, gi - 8, 1))
        for x in valu(0, gi): e(x)
        if extra and gi % 2 == 1: emit_dma_block(extra.pop(0))
    for blk in extra: emit_dma_block(blk)
    g.stamp()
    BG = opt.bgap
    pend = []
    for n in range(1, 15):
        extra = []
        kq = list(range(8)) if n < 14 else []
        hasbar = (n % 2 == 0)
        for gi in range(16):
            if gi == 0:
                e("s_waitcnt lgkmcnt(11)" if n == 1 else "s_waitcnt lgkmcnt(15)")
                if n < 14:
                    for x in rebias("K", (n + 2) >> 1): e(x)
            if gi == 4 and n == 1: e("s_waitcnt lgkmcnt(4)")
            if gi == 8:
                if not (hasbar and BG > 0 and False): e(f"s_waitcnt lgkmcnt({8 if n < 14 else 0})")
                for x in rebias("V", n >> 1): e(x)
            if hasbar and gi == BG:
                t = n // 2 + 1
                barrier_point(t)
                extra = dma_groups(t)
            if gi < 8:
                e(qk(n + 1, gi))
                if not hasbar or gi >= BG:
                    cnt = 0
                    while kq and kq[0] <= gi and cnt < 2:
                        e(kread(n + 2, kq.pop(0))); cnt += 1
            else:
                assert not kq
                e(pv(n - 1, gi - 8))
                e(vread(n, gi - 8, 0)); e(vread(n, gi - 8, 1))
            for x in valu(n, gi): e(x)
            if opt.spread:
                if extra:
                    for blk in extra:
                        pend.append(blk[:3])
                        for x in blk[3:]: pend.append([x])
                    extra = []
                if pend and (gi % opt.spread == opt.spread - 1): emit_dma_block(pend.pop(0))
            elif extra and gi >= BG and gi % 3 == opt.dmaph: emit_dma_block(extra.pop(0))
        for blk in extra: emit_dma_block(blk)
        if n % 2 == 1:
            for blk in pend: emit_dma_block(blk)
            pend = []
        if n % 2 == 0: g.stamp()
    if opt.latecvt:
        for k_ in range(4): e(cvt(14, 2 * k_))
        late = [cvt(14, 8 + 2 * k_) for k_ in range(4)]
        e(add(14, 15))
        for gi in range(16):
            if gi % 2 == 0:
                f = gi // 2
                if f == 0: e("s_waitcnt lgkmcnt(8)")
                if f == 4: e("s_waitcnt lgkmcnt(8)")
                e(pv(14, f)); e(vread(15, f, 0)); e(vread(15, f, 1))
            if late: e(late.pop(0))
            vP[1] = vK + 24
            out = [exp(15, gi)]
            if gi < 15: out.append(fma(15, gi + 1))
            if gi >= 1: out.append(add(15, gi - 1))
            if gi % 2 == 0 and gi >= 2: out.append(cvt(15, gi - 2))
            for x in out: e(x)
    else:
        for gi in range(16):
            if gi % 2 == 0:
                f = gi // 2
                if f == 0: e("s_waitcnt lgkmcnt(8)")
                if f == 4: e("s_waitcnt lgkmcnt(8)")
                e(pv(14, f)); e(vread(15, f, 0)); e(vread(15, f, 1))
            for x in valu(15, gi): e(x)
    e(add(15, 15)); e(cvt(15, 14))
    g.stamp()
    def muls(db): return [f"v_mul_f32 v{vO+16*db+i}, v5, v{vO+16*db+i}" for i in range(16)]
    def pack(db):
        O = vO + 16 * db; Rr = vK + 8 * (db % 3); out = []
        for gq in range(4):
            out.append(f"v_cvt_pk_bf16_f32 v{Rr+2*gq}, v{O+4*gq}, v{O+4*gq+1}")
            out.append(f"v_cvt_pk_bf16_f32 v{Rr+2*gq+1}, v{O+4*gq+2}, v{O+4*gq+3}")
            ch = 4 * db + gq
            out.append(f"ds_write_b64 v{vKA+(ch&7)}, v[{Rr+2*gq}:{Rr+2*gq+1}] offset:{4096*(ch>>3)}")
        return out
    def rd(h): return [f"ds_read_b128 v[{vS[0]+16*h+4*i}:{vS[0]+16*h+4*i+3}], v{vOR} offset:{4096*h+1024*i}" for i in range(4)]
    def stv(h, i): return f"buffer_store_dwordx4 v[{vS[0]+16*h+4*i}:{vS[0]+16*h+4*i+3}], v{vOS}, s[{sOSRD}:{sOSRD+3}], s{sQOFF if i < 2 else sT2} offen offset:{128*h+2048*(i&1)} {stflag}"
    e(f"v_mov_b32 v4, v{vL}")
    e("s_waitcnt lgkmcnt(6)")
    e(pv(15, 0))
    e(f"v_permlane32_swap_b32 v{vL}, v4")
    e(f"s_mov_b32 s{sTMP}, 0x{f32bits(2.0**30):08x}")
    e(f"v_add_f32 v{vL}, v{vL}, v4")
    e(f"v_rcp_f32 v5, v{vL}")
    e(pv(15, 4))
    e(f"v_cmp_nge_f32 vcc, s{sTMP}, v{vL}")
    e(f"v_mov_b32 v{vKA}, v{vOW}")
    for i in range(1, 4): e(f"v_xor_b32 v{vKA+i}, {16*i}, v{vOW}")
    e("s_waitcnt lgkmcnt(0)")
    e(pv(15, 1))
    for i in range(4, 8): e(f"v_xor_b32 v{vKA+i}, {16*i}, v{vOW}")
    e(f"s_add_u32 s{sT2}, s{sQOFF}, 4096")
    e(pv(15, 5))
    q_ = muls(0) + pack(0)
    ms = [pv(15, 2), pv(15, 6), pv(15, 3), pv(15, 7)]
    for k_, x in enumerate(q_):
        e(x)
        if k_ % 6 == 5 and ms: e(ms.pop(0))
    assert not ms
    for x in muls(1) + pack(1): e(x)
    m2 = muls(2)
    for x in m2[:8]: e(x)
    e("s_waitcnt lgkmcnt(0)")
    for x in rd(0): e(x)
    for x in m2[8:] + pack(2)[:6]: e(x)
    e("s_waitcnt lgkmcnt(2)")
    p2 = pack(2)[6:]; m3 = muls(3)
    e(stv(0, 0));
    for x in p2[:3]: e(x)
    e(stv(0, 1))
    for x in p2[3:]: e(x)
    e(stv(0, 2))
    for x in m3[:8]: e(x)
    e(stv(0, 3))
    for x in m3[8:] + pack(3): e(x)
    e("s_waitcnt lgkmcnt(0)")
    for x in rd(1): e(x)
    for i in range(4):
        e(f"s_waitcnt lgkmcnt({3-i})"); e(stv(1, i))
    g.stamp()
    e("s_cmp_lg_u64 vcc, 0")
    e(f"s_cselect_b32 s{sTMP}, 1, 0")
    e(f"s_lshl_b32 s{sT2}, s{sWID}, 2")
    e(f"v_mov_b32 v4, s{sT2}")
    e(f"v_mov_b32 v6, s{sTMP}")
    e(f"ds_write_b32 v4, v6 offset:{FLAG_OFF}")
    e("s_waitcnt lgkmcnt(0)")
    if n_skew:
        e(f"s_cmp_lg_u32 s{sISB}, 0"); e("s_cbranch_scc1 L_fb")
        for i in range(n_skew): e("s_barrier")
        g.lab("L_fb")
    e("s_barrier")
    e(f"v_and_b32 v4, 7, v{vB}")
    e("v_lshlrev_b32 v4, 2, v4")
    e(f"ds_read_b32 v6, v4 offset:{FLAG_OFF}")
    e("s_waitcnt lgkmcnt(0)")
    e("v_cmp_ne_u32 vcc, 0, v6")
    e(f"s_cmp_lg_u32 s{sREDO}, 0")
    e("s_cbranch_scc1 L_fin")
    e("s_cbranch_vccnz L_redo")
    g.lab("L_fin")
    if opt.probe is not None:
        e("s_waitcnt vmcnt(0)")
        g.stamp()
        e("s_waitcnt lgkmcnt(0)")
        e("s_sub_u32 s64, s62, s60")
        e("s_add_u32 s64, s64, 6000")
        g.lab("L_dly")
        e("s_sleep 2")
        e("s_memrealtime s[66:67]"); e("s_waitcnt lgkmcnt(0)"); e("s_sub_u32 s65, s66, s60"); e("s_cmp_lt_u32 s65, s64"); e("s_cbranch_scc1 L_dly")
    if opt.stamps:
        e("s_waitcnt vmcnt(0)")
        g.stamp()
        e("s_memrealtime s[48:49]")
        e("s_waitcnt lgkmcnt(0)")
        e(f"s_lshl_b32 s36, s2, 3"); e(f"s_add_u32 s36, s36, s{sWID}"); e("s_lshl_b32 s36, s36, 7")
        e("v_mov_b32 v4, s36")
        e("v_cmp_eq_u32 vcc, 0, v2"); e("s_and_saveexec_b64 s[42:43], vcc")
        e("v_mov_b32 v6, s46"); e("global_store_dword v4, v6, s[44:45] offset:0")
        e("v_mov_b32 v6, s48"); e("global_store_dword v4, v6, s[44:45] offset:4")
        for i in range(1, g.nstamp):
            e(f"s_sub_u32 s36, s{50+2*i}, s50"); e("v_mov_b32 v6, s36"); e(f"global_store_dword v4, v6, s[44:45] offset:{4+4*i}")
        e("s_waitcnt vmcnt(0)")
    g.lab("L_end")
    e("s_endpgm")
    g.lab("L_redo")
    e("s_barrier")
    e(f"s_mov_b32 s{sREDO}, 1")
    e(f"v_and_b32 v4, 31, v{vB}"); e(f"v_lshrrev_b32 v6, 5, v{vB}")
    e(f"v_lshlrev_b32 v4, 8, v4"); e(f"v_lshl_add_u32 v4, v6, 4, v4")
    e(f"v_mov_b32 v{vM}, 0xff800000")
    e(f"s_mov_b32 s{sT2}, s{sKVOFF}")
    e(f"s_add_u32 s38, s{sKVOFF}, 131072")
    g.lab("L_redo_loop")
    e("s_waitcnt vmcnt(0)")
    for s in range(8):
        e(f"buffer_load_dwordx4 v[{vK+4*s}:{vK+4*s+3}], v4, s[{sKSRD}:{sKSRD+3}], s{sT2} offen offset:{32*s}")
    e("s_waitcnt vmcnt(0)")
    for s in range(8): e(qk(0, s))
    e("s_nop 15"); e("s_nop 7")
    for i in range(0, 16, 2): e(f"v_max3_f32 v{vM}, v{vM}, v{S0+i}, v{S0+i+1}")
    e(f"s_add_u32 s{sT2}, s{sT2}, 8192")
    e(f"s_cmp_lt_u32 s{sT2}, s38")
    e("s_cbranch_scc1 L_redo_loop")
    e(f"v_mov_b32 v4, v{vM}")
    e("s_nop 1")
    e(f"v_permlane32_swap_b32 v{vM}, v4")
    e(f"v_max_f32 v{vM}, v{vM}, v4")
    e("s_branch L_restart")
    g.L.append('.section .rodata,"a"'); g.L.append(".p2align 6"); g.L.append(f".amdhsa_kernel {KNAME}")
    for l in [f".amdhsa_next_free_vgpr {NV}", ".amdhsa_next_free_sgpr 102", f".amdhsa_accum_offset {NV}", ".amdhsa_group_segment_fixed_size 0",
              ".amdhsa_kernarg_size 48", ".amdhsa_user_sgpr_count 2", ".amdhsa_user_sgpr_kernarg_segment_ptr 1", ".amdhsa_system_sgpr_workgroup_id_x 1"]:
        g.L.append("  " + l)
    g.L.append(".end_amdhsa_kernel")
    g.L.append(f"; nstamp={g.nstamp}")
    return "\n".join(g.L) + "\n"

if __name__ == "__main__":
    ap = argparse.ArgumentParser()
    ap.add_argument("-o", default="standalone__gqa_softmax__near_ridge.s")
    ap.add_argument("--skew", type=int, default=2)
    ap.add_argument("--qb_after", type=int, default=1)
    ap.add_argument("--sched", default="-1:K1,V0 0:K2,V1 1:K3,V2 2:K4,V3 3:K5,V4 4:K6,V5 5:K7,V6 6:V7")
    ap.add_argument("--p0_after_q", action="store_true")
    ap.add_argument("--bgap", type=int, default=2)
    ap.add_argument("--dmaph", type=int, default=0)
    ap.add_argument("--spread", type=int, default=0)
    ap.add_argument("--prio", default="")
    ap.add_argument("--latecvt", action="store_true")
    ap.add_argument("--stamps", action="store_true")
    ap.add_argument("--rt", action="store_true")
    ap.add_argument("--probe", type=int, default=None)
    ap.add_argument("--ldflag", default="")
    ap.add_argument("--qflag", default="")
    ap.add_argument("--stflag", default="nt")
    opt = ap.parse_args()
    open(opt.o, "w").write(build(opt))
```

```python
import sys, math, argparse, struct

KNAME = "standalone__gqa_softmax__near_ridge_kernel"
C_SCALE = (128 ** -0.5) * math.log2(math.e)
def f32bits(x): return struct.unpack("<I", struct.pack("<f", x))[0]

class Gen:
    def __init__(self, opt):
        self.o = opt; self.L = []; self.vm = []; self.nstamp = 0; self.nlab = 0
    def e(self, s): self.L.append("    " + s)
    def lab(self, s): self.L.append(s + ":")
    def newlab(self, p="L"):
        self.nlab += 1; return f"{p}_{self.nlab}"
    def vm_issue(self, tag): self.vm.append(tag)
    def vm_wait(self, tags):
        idx = [i for i, t in enumerate(self.vm) if t in tags]
        if not idx: return
        self.e(f"s_waitcnt vmcnt({min(63, len(self.vm) - 1 - max(idx))})")
    def stamp(self):
        if self.o.probe is not None:
            i = self.nstamp; self.nstamp += 1
            if i == 0: self.e("s_memrealtime s[60:61]")
            if i == self.o.probe: self.e("s_memrealtime s[62:63]")
            return
        if not self.o.stamps: return
        i = self.nstamp; self.nstamp += 1
        assert i < 24
        self.e(f"{'s_memrealtime' if self.o.rt else 's_memtime'} s[{50+2*i}:{51+2*i}]")

def parse_sched(txt):
    d = {}
    for tok in txt.replace("_", " ").split():
        j, lst = tok.split(":")
        d[int(j)] = [x for x in lst.split(",") if x]
    return d

def build(opt):
    g = Gen(opt); e = g.e
    R = 5; NS = opt.skew
    KBASE = 0; VBASE = R * 16384
    lds_bytes = 163840
    FLAG_OFF = 0
    ldflag = opt.ldflag; qflag = opt.qflag; stflag = opt.stflag
    needK = lambda p: p
    needV = lambda p: p + 1
    schedB = parse_sched(opt.schedB)
    schedA = parse_sched(opt.schedA)
    when = {}
    for d in (schedB, schedA):
        for j, l in d.items():
            for x in l:
                if x[0] == "P": continue
                assert x not in when; when[x] = j
    for p in range(8):
        if p > 0:
            w_ = when[f"K{p}"]
            assert w_ < needK(p) and (p < 5 or w_ >= p - 4 + NS) and (p not in (3, 4) or w_ >= 1), f"K{p}"
        w_ = when[f"V{p}"]
        assert w_ < needV(p) and (p < 5 or w_ >= p - 3 + NS) and (p not in (3, 4) or w_ >= NS + opt.lateq), f"V{p}"
    assert all(j < NS + opt.lateq for j in schedB) and all(j >= NS or j == -1 for j in schedA)
    sKSRD, sVSRD, sQSRD, sOSRD = 8, 12, 16, 20
    sW4K = 24; sKVOFF = 25; sQOFF = 26; sC = 27; sREDO = 28; sTMP = 29; sWID = 30; sT2 = 31; sSTG = 39; sISB = 40; sFLAG = 41
    vQ = 8; vO = 40; vS = [104, 120]; vP = [136, 136]; vK = 152; vV = 184
    vX = [216, 217]; vL = 222; vMC = 223; vM = 224
    vT = [144,145,146,147,148,149,150,151,218,219,220,221,248,249,250,251]
    vKA = 226; vVA = 234; vDK = 238; vDV = 242; vQO = 243; vOW = 244; vOR = 245; vOS = 246
    vPF = 247; vPFD = 225
    vA, vB, vC_ = 1, 2, 3
    NV = 252

    g.L.append(f"; @launch grid=(256,1,1) block=(512,1,1) lds={lds_bytes}")
    g.L.append('.amdgcn_target "amdgcn-amd-amdhsa--gfx950"')
    g.L.append(".text"); g.L.append(f".globl {KNAME}"); g.L.append(".p2align 8"); g.L.append(f".type {KNAME},@function")
    g.lab(KNAME)
    e("s_load_dwordx4 s[4:7], s[0:1], 0")
    e("s_load_dwordx4 s[32:35], s[0:1], 16")
    g.stamp()
    if opt.stamps: e("s_memrealtime s[46:47]"); e("s_load_dwordx2 s[44:45], s[0:1], 40")
    e("s_cmp_ge_u32 s2, 256")
    e("s_cbranch_scc1 L_end")
    e(f"v_lshrrev_b32 v{vA}, 6, v0")
    e(f"v_and_b32 v{vB}, 63, v0")
    e(f"v_readfirstlane_b32 s{sWID}, v{vA}")
    e("s_and_b32 s36, s2, 7")
    e("s_lshr_b32 s37, s2, 3")
    e("s_lshl_b32 s38, s36, 5")
    e("s_add_u32 s38, s38, s37")
    e(f"s_lshl_b32 s{sQOFF}, s38, 16")
    e("s_lshl_b32 s38, s36, 3")
    e("s_lshr_b32 s37, s37, 2")
    e("s_add_u32 s38, s38, s37")
    e(f"s_lshl_b32 s{sKVOFF}, s38, 17")
    e(f"s_mov_b32 s{sREDO}, 0")
    e(f"s_mov_b32 s{sC}, 0x{f32bits(C_SCALE):08x}")
    e(f"s_and_b32 s36, s{sWID}, 3")
    e(f"s_lshl_b32 s{sW4K}, s36, 12")
    e(f"s_lshr_b32 s{sISB}, s{sWID}, 2")
    e(f"s_lshl_b32 s{sSTG}, s36, 13")
    e(f"s_mul_i32 s{sTMP}, s{sISB}, {VBASE}")
    e(f"s_add_u32 s{sSTG}, s{sSTG}, s{sTMP}")
    e(f"s_add_u32 s{sSTG}, s{sSTG}, {3*16384}")
    e(f"v_lshrrev_b32 v{vC_}, 4, v{vB}")
    e(f"v_and_b32 v4, 15, v{vB}")
    e(f"v_xor_b32 v6, v{vC_}, v4")
    e(f"v_and_b32 v7, 3, v{vA}")
    e(f"v_lshl_add_u32 v5, v7, 4, v{vC_}")
    e(f"v_lshlrev_b32 v5, 8, v5")
    e(f"v_lshl_add_u32 v{vDK}, v6, 4, v5")
    for p in range(1, 4): e(f"v_xor_b32 v{vDK+p}, {64*p}, v{vDK}")
    e(f"v_lshl_add_u32 v7, v{vA}, 5, v{vC_}")
    e(f"v_lshlrev_b32 v7, 8, v7")
    e(f"v_lshl_add_u32 v{vQO}, v6, 4, v7")
    e(f"v_lshlrev_b32 v6, 2, v{vC_}")
    e(f"v_xor_b32 v6, v6, v4")
    e(f"v_lshl_add_u32 v{vDV}, v6, 4, v5")
    e("s_waitcnt lgkmcnt(0)")
    def srd(d, p, n):
        e(f"s_mov_b32 s{d}, s{p}"); e(f"s_and_b32 s{d+1}, s{p+1}, 0xffff"); e(f"s_mov_b32 s{d+2}, {n}"); e(f"s_mov_b32 s{d+3}, 0x20000")
    srd(sKSRD, 6, 8388608); srd(sQSRD, 4, 16777216); srd(sVSRD, 32, 8388608); srd(sOSRD, 34, 16777216)
    g.lab("L_restart")
    for i in range(1, 4): e(f"v_xor_b32 v{vK+i}, {64*i}, v{vQO}")
    def dma_items(x):
        out = []
        if x[0] == "P":
            kind, t = x[1], int(x[2:])
            srdn = sKSRD if kind == "K" else sVSRD
            out.append(f"s_add_u32 s{sTMP}, s{sKVOFF}, {t*16384}")
            out.append((f"buffer_load_dword v{vPFD}, v{vPF}, s[{srdn}:{srdn+3}], s{sTMP} offen", x))
            return out
        if x[0] == "Q":
            half = 0 if x == "Qa" else 1
            out += [f"s_add_u32 m0, s{sSTG}, {4096*half}", f"s_add_u32 s{sTMP}, s{sQOFF}, {4096*half}"]
            for i in range(4):
                va = vQO if i == 0 else vK + i
                out.append((f"buffer_load_dwordx4 v{va}, s[{sQSRD}:{sQSRD+3}], s{sTMP} offen offset:{1024*i} {qflag} lds", x))
            return out
        kind, p = x[0], int(x[1:])
        base = (KBASE if kind == "K" else VBASE) + (p % R) * 16384
        srdn = sKSRD if kind == "K" else sVSRD
        out += [f"s_add_u32 m0, s{sW4K}, {base}", f"s_add_u32 s{sTMP}, s{sKVOFF}, {p*16384}"]
        for i in range(4):
            va = vDK + i if kind == "K" else vDV
            out.append((f"buffer_load_dwordx4 v{va}, s[{srdn}:{srdn+3}], s{sTMP} offen offset:{1024*i} {ldflag} lds", x))
        return out
    def emit_items(lst):
        for y in lst:
            if isinstance(y, tuple): e(y[0]); g.vm_issue(y[1])
            else: e(y)
    def dma(x): emit_items(dma_items(x))
    def guarded(lst):
        l = g.newlab("L_nd")
        e(f"s_cmp_lg_u32 s{sISB}, 0"); e(f"s_cbranch_scc1 {l}")
        emit_items(lst)
        g.lab(l)
    def addrs():
        e(f"v_and_b32 v4, 31, v{vB}")
        e(f"v_lshrrev_b32 v6, 5, v{vB}")
        e(f"v_and_b32 v5, 15, v4")
        e(f"v_xor_b32 v5, v5, v6")
        e(f"v_lshlrev_b32 v5, 4, v5")
        e(f"v_lshl_add_u32 v{vKA}, v4, 8, v5")
        for s in range(1, 8): e(f"v_xor_b32 v{vKA+s}, {32*s}, v{vKA}")
        e(f"v_bfe_u32 v4, v{vB}, 2, 2")
        e(f"v_lshl_add_u32 v5, v6, 2, v4")
        e(f"v_lshlrev_b32 v5, 8, v5")
        e(f"v_lshl_add_u32 v5, v4, 6, v5")
        e(f"v_bfe_u32 v4, v{vB}, 4, 1")
        e(f"v_lshl_add_u32 v5, v4, 5, v5")
        e(f"v_and_b32 v4, 3, v{vB}")
        e(f"v_lshl_add_u32 v5, v4, 3, v5")
        e(f"v_add_u32 v{vVA}, {VBASE}, v5")
        for db in range(1, 4): e(f"v_xor_b32 v{vVA+db}, {64*db}, v{vVA}")
        e(f"v_mov_b32 v{vL}, 0")
        e(f"v_lshlrev_b32 v{vOR}, 4, v{vB}")
        e(f"v_add_u32 v{vOR}, s{sSTG}, v{vOR}")
        e(f"v_and_b32 v4, 31, v{vB}")
        e(f"v_lshlrev_b32 v5, 7, v4")
        e(f"v_lshl_add_u32 v5, v6, 3, v5")
        e(f"v_and_b32 v4, 7, v4")
        e(f"v_lshl_add_u32 v5, v4, 4, v5")
        e(f"v_add_u32 v{vOW}, s{sSTG}, v5")
        e(f"v_lshrrev_b32 v4, 3, v{vB}")
        e(f"v_and_b32 v5, 7, v{vB}")
        e(f"v_xor_b32 v5, v5, v4")
        e(f"v_lshl_add_u32 v4, v{vA}, 5, v4")
        e(f"v_lshlrev_b32 v4, 8, v4")
        e(f"v_lshl_add_u32 v{vOS}, v5, 4, v4")
        for s in range(8): e(f"v_add_u32 v{vV+s}, s{sSTG}, v{vKA+s}")
    def qread():
        for s in range(8): e(f"ds_read_b128 v[{vQ+4*s}:{vQ+4*s+3}], v{vV+s}")
    needed_at = lambda j: {f"K{p}" for p in range(8) if needK(p) == j} | {f"V{p}" for p in range(8) if needV(p) == j}

    e(f"s_cmp_lg_u32 s{sISB}, 0")
    e("s_cbranch_scc1 L_proB")
    g.vm = []
    dma("K0"); dma("Qa"); dma("Qb")
    for x in schedA.get(-1, []): dma(x)
    addrs()
    if opt.prio: e(f"s_setprio {opt.prio}")
    g.vm_wait({"K0"})
    vmA = g.vm
    e("s_branch L_main")
    g.lab("L_proB")
    g.vm = []
    e(f"s_bfe_u32 s36, s2, 0x20003")
    e(f"s_lshl_b32 s36, s36, 12")
    e(f"s_lshl_b32 s37, s{sW4K}, 2")
    e(f"s_add_u32 s36, s36, s37")
    e(f"v_lshl_add_u32 v{vPF}, v{vB}, 6, s36")
    addrs()
    for x in schedB.get(-1, []): dma(x)
    for j in range(NS):
        g.vm_wait(needed_at(j))
        e("s_barrier")
        for x in schedB.get(j, []): dma(x)
    if opt.lateq:
        g.vm_wait(needed_at(NS))
        vmB = g.vm
    else:
        g.vm_wait({"Qa", "Qb"})
        qread()
        g.vm_wait({x for x in g.vm if x[0] != "P"})
        e("s_waitcnt lgkmcnt(0)")
    g.lab("L_main")
    g.vm = vmA
    st = {"K": 0, "V": 0}
    def rebias(kind, t):
        want = 65536 if (t % R) == 4 else 0
        if st[kind] != want:
            regs = [vKA + s for s in range(8)] if kind == "K" else [vVA + d for d in range(4)]
            for r_ in regs: e(f"v_add_u32 v{r_}, {65536 if want else -65536 & 0xffffffff}, v{r_}")
            st[kind] = want

    def kread(n, s):
        t, blk = n >> 1, n & 1
        return f"ds_read_b128 v[{vK+4*s}:{vK+4*s+3}], v{vKA+s} offset:{KBASE + (t % R) * 16384 + blk * 8192 - st['K']}"
    def vread(n, f, h):
        t, blk = n >> 1, n & 1
        j, db = (f >> 2, f & 3)
        return f"ds_read_b64_tr_b16 v[{vV+4*f+2*h}:{vV+4*f+2*h+1}], v{vVA+db} offset:{(t % R) * 16384 + (blk * 32 + 16 * j + 8 * h) * 256 - st['V']}"
    def qk(n, s):
        S = vS[n & 1]
        cin = "0" if s == 0 else f"v[{S}:{S+15}]"
        return f"v_mfma_f32_32x32x16_bf16 v[{S}:{S+15}], v[{vK+4*s}:{vK+4*s+3}], v[{vQ+4*s}:{vQ+4*s+3}], {cin}"
    def pv(n, f):
        j, db = (f >> 2, f & 3)
        O = vO + 16 * db; P = vP[n & 1] + 4 * j
        cin = "0" if (n == 0 and j == 0) else f"v[{O}:{O+15}]"
        return f"v_mfma_f32_32x32x16_bf16 v[{O}:{O+15}], v[{vV+4*f}:{vV+4*f+3}], v[{P}:{P+3}], {cin}"
    def fma(n, i): return f"v_fma_f32 v{vX[i&1]}, v{vS[n&1]+i}, s{sC}, -v{vMC}"
    def exp(n, i): return f"v_exp_f32 v{vT[i]}, v{vX[i&1]}"
    def add(n, i): return f"v_add_f32 v{vL}, v{vL}, v{vT[i]}"
    def cvt(n, i): return f"v_cvt_pk_bf16_f32 v{vP[n&1]+(i>>1)}, v{vT[i]}, v{vT[i+1]}"

    g.stamp()
    e("s_barrier")
    g.stamp()
    for s in range(8): e(kread(0, s))
    if opt.lateq:
        e(f"s_cmp_lg_u32 s{sISB}, 0"); e("s_cbranch_scc1 L_bq")
        g.vm_wait({"Qb"})
        e("s_branch L_haveq")
        g.lab("L_bq")
        g.vm = vmB
        for x in schedB.get(NS, []): dma(x)
        g.vm_wait({"Qa", "Qb"})
        nPF = 0
        while g.vm[-1 - nPF][0] == "P": nPF += 1
        g.vm = vmA
        g.lab("L_haveq")
        qread()
    else:
        e(f"s_cmp_lg_u32 s{sISB}, 0"); e("s_cbranch_scc1 L_haveq")
        g.vm_wait({"Qb"})
        qread()
        g.lab("L_haveq")
    e("s_waitcnt lgkmcnt(0)")
    g.stamp()
    for s in range(8):
        e(qk(0, s)); e(kread(1, s))
    S0 = vS[0]
    e("s_waitcnt lgkmcnt(4)")
    e(qk(1, 0)); e(qk(1, 1))
    e("s_nop 7")
    e(f"s_cmp_lg_u32 s{sREDO}, 0")
    e("s_cbranch_scc1 L_have_m")
    e(f"v_max3_f32 v{vM}, v{S0}, v{S0+1}, v{S0+2}")
    e(f"v_max3_f32 v4, v{S0+3}, v{S0+4}, v{S0+5}")
    e(f"v_max3_f32 v5, v{S0+6}, v{S0+7}, v{S0+8}")
    e(f"v_max3_f32 v6, v{S0+9}, v{S0+10}, v{S0+11}")
    e(f"v_max3_f32 v7, v{S0+12}, v{S0+13}, v{S0+14}")
    e(f"v_max3_f32 v{vM}, v{vM}, v4, v{S0+15}")
    e(f"v_max3_f32 v5, v5, v6, v7")
    e(f"v_max_f32 v{vM}, v{vM}, v5")
    e(f"v_mov_b32 v4, v{vM}")
    e("s_nop 1")
    e(f"v_permlane32_swap_b32 v{vM}, v4")
    e(f"v_max_f32 v{vM}, v{vM}, v4")
    g.lab("L_have_m")
    e(qk(1, 2))
    e(f"v_mul_f32 v{vMC}, s{sC}, v{vM}")
    e(fma(0, 0))
    def valu(n, gi):
        out = [exp(n, gi)]
        out.append(fma(n, gi + 1) if gi < 15 else (fma(n + 1, 0) if n < 15 else None))
        if gi >= 1: out.append(add(n, gi - 1))
        elif n >= 1: out.append(add(n - 1, 15))
        if n >= 1 and gi < 8:
            out.insert(0, cvt(n - 1, 0)) if gi == 0 else out.append(cvt(n - 1, 2 * gi))
        return [x for x in out if x]
    mf = [qk(1, s) for s in range(3, 8)]
    for gi in range(10):
        if gi % 2 == 0:
            if gi == 2: e("s_waitcnt lgkmcnt(0)")
            e(mf.pop(0))
        for x in valu(0, gi): e(x)
    if opt.lateq:
        assert all(x in needed_at(1) for x in schedA.get(-1, [])) and nPF == 0
        e("s_waitcnt vmcnt(0)")
    else:
        g.vm_wait(needed_at(1))
    e("s_barrier")
    assert not schedA.get(0) and not schedA.get(1)
    rd0 = [kread(2, s) for s in range(8)] + [vread(0, f, h) for f in range(8) for h in range(2)]
    for gi in range(10, 16):
        for _ in range(4): e(rd0.pop(0))
        for x in valu(0, gi): e(x)
    g.stamp()
    BG = opt.bgap
    pend = []
    for n in range(1, 15):
        kq = list(range(8)) if n < 14 else []
        hasbar = (n % 2 == 0)
        for gi in range(16):
            if gi == 0:
                e("s_waitcnt lgkmcnt(15)")
                if n < 14: rebias("K", (n + 2) >> 1)
            if gi == 8:
                if not (hasbar and n == 14): e("s_waitcnt lgkmcnt(8)")
                rebias("V", n >> 1)
            if hasbar and gi == BG:
                t = n // 2 + 1
                g.vm_wait(needed_at(t))
                e("s_waitcnt lgkmcnt(0)")
                e("s_barrier")
                for x in schedA.get(t, []):
                    it = dma_items(x)
                    k_ = len(it) - 3 if len(it) > 2 else len(it)
                    pend.append(it[:k_])
                    for y in it[k_:]: pend.append([y])
            if gi < 8:
                e(qk(n + 1, gi))
                if not hasbar or gi >= BG:
                    cnt = 0
                    while kq and kq[0] <= gi and cnt < 2:
                        e(kread(n + 2, kq.pop(0))); cnt += 1
            else:
                assert not kq
                e(pv(n - 1, gi - 8))
                e(vread(n, gi - 8, 0)); e(vread(n, gi - 8, 1))
            for x in valu(n, gi): e(x)
            if pend and gi % opt.spread == opt.spread - 1: guarded(pend.pop(0))
        if n % 2 == 1:
            for blk in pend: guarded(blk)
            pend = []
        if n % 2 == 0: g.stamp()
    assert not pend
    for k_ in range(4): e(cvt(14, 2 * k_))
    late = [cvt(14, 8 + 2 * k_) for k_ in range(4)]
    e(add(14, 15))
    vP[1] = vK + 24
    for gi in range(16):
        if gi % 2 == 0:
            f = gi // 2
            if f in (0, 4): e("s_waitcnt lgkmcnt(8)")
            e(pv(14, f)); e(vread(15, f, 0)); e(vread(15, f, 1))
        if late: e(late.pop(0))
        out = [exp(15, gi)]
        if gi < 15: out.append(fma(15, gi + 1))
        if gi >= 1: out.append(add(15, gi - 1))
        if gi % 2 == 0 and gi >= 2: out.append(cvt(15, gi - 2))
        for x in out: e(x)
    e(add(15, 15)); e(cvt(15, 14))
    g.stamp()
    def muls(db): return [f"v_mul_f32 v{vO+16*db+i}, v5, v{vO+16*db+i}" for i in range(16)]
    def pack(db):
        O = vO + 16 * db; Rr = vK + 8 * (db % 3); out = []
        for gq in range(4):
            out.append(f"v_cvt_pk_bf16_f32 v{Rr+2*gq}, v{O+4*gq}, v{O+4*gq+1}")
            out.append(f"v_cvt_pk_bf16_f32 v{Rr+2*gq+1}, v{O+4*gq+2}, v{O+4*gq+3}")
            ch = 4 * db + gq
            out.append(f"ds_write_b64 v{vKA+(ch&7)}, v[{Rr+2*gq}:{Rr+2*gq+1}] offset:{4096*(ch>>3)}")
        return out
    def rd(h): return [f"ds_read_b128 v[{vS[0]+16*h+4*i}:{vS[0]+16*h+4*i+3}], v{vOR} offset:{4096*h+1024*i}" for i in range(4)]
    def stv(h, i): return f"buffer_store_dwordx4 v[{vS[0]+16*h+4*i}:{vS[0]+16*h+4*i+3}], v{vOS}, s[{sOSRD}:{sOSRD+3}], s{sQOFF if i < 2 else sT2} offen offset:{128*h+2048*(i&1)} {stflag}"
    e(f"v_mov_b32 v4, v{vL}")
    e("s_waitcnt lgkmcnt(6)")
    e(pv(15, 0))
    e(f"v_permlane32_swap_b32 v{vL}, v4")
    e(f"s_mov_b32 s{sTMP}, 0x{f32bits(2.0**30):08x}")
    e(f"v_add_f32 v{vL}, v{vL}, v4")
    e(f"v_rcp_f32 v5, v{vL}")
    e(pv(15, 4))
    e(f"v_cmp_nge_f32 vcc, s{sTMP}, v{vL}")
    e(f"v_mov_b32 v{vKA}, v{vOW}")
    for i in range(1, 4): e(f"v_xor_b32 v{vKA+i}, {16*i}, v{vOW}")
    e("s_waitcnt lgkmcnt(0)")
    nearly = 0
    if opt.early9:
        guarded(["s_barrier"]); nearly += 1
    e(pv(15, 1))
    for i in range(4, 8): e(f"v_xor_b32 v{vKA+i}, {16*i}, v{vOW}")
    e(f"s_add_u32 s{sT2}, s{sQOFF}, 4096")
    e(pv(15, 5))
    q_ = muls(0) + pack(0)
    ms = [pv(15, 2), pv(15, 6), pv(15, 3), pv(15, 7)]
    for k_, x in enumerate(q_):
        e(x)
        if k_ % 6 == 5 and ms: e(ms.pop(0))
    if opt.prio: e("s_setprio 0")
    e("s_cmp_lg_u64 vcc, 0")
    e(f"s_cselect_b32 s{sFLAG}, 1, 0")
    for x in muls(1) + pack(1): e(x)
    m2 = muls(2)
    for x in m2[:8]: e(x)
    e("s_waitcnt lgkmcnt(0)")
    for x in rd(0): e(x)
    for x in m2[8:] + pack(2)[:6]: e(x)
    e("s_waitcnt lgkmcnt(2)")
    p2 = pack(2)[6:]; m3 = muls(3)
    e(stv(0, 0))
    for x in p2[:3]: e(x)
    e(stv(0, 1))
    for x in p2[3:]: e(x)
    e(stv(0, 2))
    for x in m3[:8]: e(x)
    e(stv(0, 3))
    for x in m3[8:] + pack(3): e(x)
    e("s_waitcnt lgkmcnt(0)")
    for x in rd(1): e(x)
    for i in range(4):
        e(f"s_waitcnt lgkmcnt({3-i})"); e(stv(1, i))
    g.stamp()
    e(f"s_cmp_lg_u32 s{sISB}, 0"); e("s_cbranch_scc1 L_fb")
    for j in range(NS - nearly): e("s_barrier")
    g.lab("L_fb")
    e(f"s_lshl_b32 s{sT2}, s{sWID}, 2")
    e(f"v_mov_b32 v4, s{sT2}")
    e(f"v_mov_b32 v6, s{sFLAG}")
    e(f"ds_write_b32 v4, v6 offset:{FLAG_OFF}")
    e("s_waitcnt lgkmcnt(0)")
    e("s_barrier")
    e(f"v_and_b32 v4, 7, v{vB}")
    e("v_lshlrev_b32 v4, 2, v4")
    e(f"ds_read_b32 v6, v4 offset:{FLAG_OFF}")
    e("s_waitcnt lgkmcnt(0)")
    e("v_cmp_ne_u32 vcc, 0, v6")
    e(f"s_cmp_lg_u32 s{sREDO}, 0")
    e("s_cbranch_scc1 L_fin")
    e("s_cbranch_vccnz L_redo")
    g.lab("L_fin")
    if opt.probe is not None:
        e("s_waitcnt vmcnt(0)")
        g.stamp()
        e("s_waitcnt lgkmcnt(0)")
        e("s_sub_u32 s64, s62, s60")
        e("s_add_u32 s64, s64, 6000")
        g.lab("L_dly")
        e("s_sleep 2")
        e("s_memrealtime s[66:67]"); e("s_waitcnt lgkmcnt(0)"); e("s_sub_u32 s65, s66, s60"); e("s_cmp_lt_u32 s65, s64"); e("s_cbranch_scc1 L_dly")
    if opt.stamps:
        e("s_waitcnt vmcnt(0)")
        g.stamp()
        e("s_memrealtime s[48:49]")
        e("s_waitcnt lgkmcnt(0)")
        e(f"s_lshl_b32 s36, s2, 3"); e(f"s_add_u32 s36, s36, s{sWID}"); e("s_lshl_b32 s36, s36, 7")
        e("v_mov_b32 v4, s36")
        e("v_cmp_eq_u32 vcc, 0, v2"); e("s_and_saveexec_b64 s[42:43], vcc")
        e("v_mov_b32 v6, s46"); e("global_store_dword v4, v6, s[44:45] offset:0")
        e("v_mov_b32 v6, s48"); e("global_store_dword v4, v6, s[44:45] offset:4")
        for i in range(1, g.nstamp):
            e(f"s_sub_u32 s36, s{50+2*i}, s50"); e("v_mov_b32 v6, s36"); e(f"global_store_dword v4, v6, s[44:45] offset:{4+4*i}")
        e("s_waitcnt vmcnt(0)")
    g.lab("L_end")
    e("s_endpgm")
    g.lab("L_redo")
    e("s_barrier")
    e(f"s_mov_b32 s{sREDO}, 1")
    e(f"v_and_b32 v4, 31, v{vB}"); e(f"v_lshrrev_b32 v6, 5, v{vB}")
    e(f"v_lshlrev_b32 v4, 8, v4"); e(f"v_lshl_add_u32 v4, v6, 4, v4")
    e(f"v_mov_b32 v{vM}, 0xff800000")
    e(f"s_mov_b32 s{sT2}, s{sKVOFF}")
    e(f"s_add_u32 s38, s{sKVOFF}, 131072")
    g.lab("L_redo_loop")
    e("s_waitcnt vmcnt(0)")
    for s in range(8):
        e(f"buffer_load_dwordx4 v[{vK+4*s}:{vK+4*s+3}], v4, s[{sKSRD}:{sKSRD+3}], s{sT2} offen offset:{32*s}")
    e("s_waitcnt vmcnt(0)")
    for s in range(8): e(qk(0, s))
    e("s_nop 15"); e("s_nop 7")
    for i in range(0, 16, 2): e(f"v_max3_f32 v{vM}, v{vM}, v{S0+i}, v{S0+i+1}")
    e(f"s_add_u32 s{sT2}, s{sT2}, 8192")
    e(f"s_cmp_lt_u32 s{sT2}, s38")
    e("s_cbranch_scc1 L_redo_loop")
    e(f"v_mov_b32 v4, v{vM}")
    e("s_nop 1")
    e(f"v_permlane32_swap_b32 v{vM}, v4")
    e(f"v_max_f32 v{vM}, v{vM}, v4")
    e("s_branch L_restart")
    g.L.append('.section .rodata,"a"'); g.L.append(".p2align 6"); g.L.append(f".amdhsa_kernel {KNAME}")
    for l in [f".amdhsa_next_free_vgpr {NV}", ".amdhsa_next_free_sgpr 102", f".amdhsa_accum_offset {NV}", ".amdhsa_group_segment_fixed_size 0",
              ".amdhsa_kernarg_size 48", ".amdhsa_user_sgpr_count 2", ".amdhsa_user_sgpr_kernarg_segment_ptr 1", ".amdhsa_system_sgpr_workgroup_id_x 1"]:
        g.L.append("  " + l)
    g.L.append(".end_amdhsa_kernel")
    g.L.append(f"; nstamp={g.nstamp}")
    return "\n".join(g.L) + "\n"

if __name__ == "__main__":
    ap = argparse.ArgumentParser()
    ap.add_argument("-o", default="standalone__gqa_softmax__near_ridge.s")
    ap.add_argument("--skew", type=int, default=3)
    ap.add_argument("--schedB", default="-1:K1,V0 0:K2,V1 1:Qa,Qb,K3,V2 2:K4,PK4,PV4")
    ap.add_argument("--schedA", default="3:V3,V4 4:K5 5:K6,V5 6:K7,V6 7:V7")
    ap.add_argument("--lateq", type=int, default=0)
    ap.add_argument("--spread", type=int, default=1)
    ap.add_argument("--early9", action="store_true")
    ap.add_argument("--pfstride", type=int, default=64)
    ap.add_argument("--bgap", type=int, default=2)
    ap.add_argument("--prio", type=int, default=0)
    ap.add_argument("--stamps", action="store_true")
    ap.add_argument("--rt", action="store_true")
    ap.add_argument("--probe", type=int, default=None)
    ap.add_argument("--ldflag", default="")
    ap.add_argument("--qflag", default="")
    ap.add_argument("--stflag", default="sc0 sc1 nt")
    opt = ap.parse_args()
    open(opt.o, "w").write(build(opt))
```

```python
import sys, math, argparse, struct

KNAME = "standalone__gqa_softmax__near_ridge_kernel"
C_SCALE = (128 ** -0.5) * math.log2(math.e)
def f32bits(x): return struct.unpack("<I", struct.pack("<f", x))[0]

class Gen:
    def __init__(self, opt):
        self.o = opt; self.L = []; self.vm = []; self.nstamp = 0; self.nlab = 0
    def e(self, s): self.L.append("    " + s)
    def lab(self, s): self.L.append(s + ":")
    def newlab(self, p="L"):
        self.nlab += 1; return f"{p}_{self.nlab}"
    def vm_issue(self, tag): self.vm.append(tag)
    def vm_wait(self, tags):
        idx = [i for i, t in enumerate(self.vm) if t in tags]
        if not idx: return
        self.e(f"s_waitcnt vmcnt({min(63, len(self.vm) - 1 - max(idx))})")
    def stamp(self):
        if self.o.probe is not None:
            i = self.nstamp; self.nstamp += 1
            if i == 0: self.e("s_memrealtime s[60:61]")
            if i == self.o.probe: self.e("s_memrealtime s[62:63]")
            return
        if not self.o.stamps: return
        i = self.nstamp; self.nstamp += 1
        assert i < 24
        self.e(f"{'s_memrealtime' if self.o.rt else 's_memtime'} s[{50+2*i}:{51+2*i}]")

def parse_sched(txt):
    d = {}
    for tok in txt.replace("_", " ").split():
        j, lst = tok.split(":")
        d[int(j)] = [x for x in lst.split(",") if x]
    return d

def build(opt):
    g = Gen(opt); e = g.e
    R = 5; NS = opt.skew
    KBASE = 0; VBASE = R * 16384
    lds_bytes = 163840
    FLAG_OFF = 0
    ldflag = opt.ldflag; qflag = opt.qflag; stflag = opt.stflag
    needK = lambda p: p
    needV = lambda p: p + 1
    schedB = parse_sched(opt.schedB)
    schedA = parse_sched(opt.schedA)
    when = {}
    for d in (schedB, schedA):
        for j, l in d.items():
            for x in l:
                if x[0] == "P": continue
                assert x not in when; when[x] = j
    for p in range(8):
        if p > 0:
            w_ = when[f"K{p}"]
            assert w_ < needK(p) and (p < 5 or w_ >= p - 4 + NS) and (p not in (3, 4) or w_ >= 1), f"K{p}"
        w_ = when[f"V{p}"]
        assert w_ < needV(p) and (p < 5 or w_ >= p - 3 + NS) and (p not in (3, 4) or w_ >= NS + opt.lateq), f"V{p}"
    assert all(j < NS + opt.lateq for j in schedB) and all(j >= NS or j == -1 for j in schedA)
    sKSRD, sVSRD, sQSRD, sOSRD = 8, 12, 16, 20
    sW4K = 24; sKVOFF = 25; sQOFF = 26; sC = 27; sREDO = 28; sTMP = 29; sWID = 30; sT2 = 31; sSTG = 39; sISB = 40; sFLAG = 41
    vQ = 8; vO = 40; vS = [104, 120]; vP = [136, 136]; vK = 152; vV = 184
    vX = [216, 217]; vL = 222; vMC = 223; vM = 224
    vT = [144,145,146,147,148,149,150,151,218,219,220,221,248,249,250,251]
    vKA = 226; vVA = 234; vDK = 238; vDV = 242; vQO = 243; vOW = 244; vOR = 245; vOS = 246
    vPF = 247; vPFD = 225
    vA, vB, vC_ = 1, 2, 3
    NV = 252

    g.L.append(f"; @launch grid=(256,1,1) block=(512,1,1) lds={lds_bytes}")
    g.L.append('.amdgcn_target "amdgcn-amd-amdhsa--gfx950"')
    g.L.append(".text"); g.L.append(f".globl {KNAME}"); g.L.append(".p2align 8"); g.L.append(f".type {KNAME},@function")
    g.lab(KNAME)
    e("s_load_dwordx4 s[4:7], s[0:1], 0")
    e("s_load_dwordx4 s[32:35], s[0:1], 16")
    g.stamp()
    if opt.stamps: e("s_memrealtime s[46:47]"); e("s_load_dwordx2 s[44:45], s[0:1], 40")
    e("s_cmp_ge_u32 s2, 256")
    e("s_cbranch_scc1 L_end")
    e(f"v_lshrrev_b32 v{vA}, 6, v0")
    e(f"v_and_b32 v{vB}, 63, v0")
    e(f"v_readfirstlane_b32 s{sWID}, v{vA}")
    e("s_and_b32 s36, s2, 7")
    e("s_lshr_b32 s37, s2, 3")
    e("s_lshl_b32 s38, s36, 5")
    e("s_add_u32 s38, s38, s37")
    e(f"s_lshl_b32 s{sQOFF}, s38, 16")
    e("s_lshl_b32 s38, s36, 3")
    e("s_lshr_b32 s37, s37, 2")
    e("s_add_u32 s38, s38, s37")
    e(f"s_lshl_b32 s{sKVOFF}, s38, 17")
    e(f"s_mov_b32 s{sREDO}, 0")
    e(f"s_mov_b32 s{sC}, 0x{f32bits(C_SCALE):08x}")
    e(f"s_and_b32 s36, s{sWID}, 3")
    e(f"s_lshl_b32 s{sW4K}, s36, 12")
    e(f"s_lshr_b32 s{sISB}, s{sWID}, 2")
    e(f"s_lshl_b32 s{sSTG}, s36, 13")
    e(f"s_mul_i32 s{sTMP}, s{sISB}, {VBASE}")
    e(f"s_add_u32 s{sSTG}, s{sSTG}, s{sTMP}")
    e(f"s_add_u32 s{sSTG}, s{sSTG}, {3*16384}")
    e(f"v_lshrrev_b32 v{vC_}, 4, v{vB}")
    e(f"v_and_b32 v4, 15, v{vB}")
    e(f"v_xor_b32 v6, v{vC_}, v4")
    e(f"v_and_b32 v7, 3, v{vA}")
    e(f"v_lshl_add_u32 v5, v7, 4, v{vC_}")
    e(f"v_lshlrev_b32 v5, 8, v5")
    e(f"v_lshl_add_u32 v{vDK}, v6, 4, v5")
    for p in range(1, 4): e(f"v_xor_b32 v{vDK+p}, {64*p}, v{vDK}")
    e(f"v_lshl_add_u32 v7, v{vA}, 5, v{vC_}")
    e(f"v_lshlrev_b32 v7, 8, v7")
    e(f"v_lshl_add_u32 v{vQO}, v6, 4, v7")
    e(f"v_lshlrev_b32 v6, 2, v{vC_}")
    e(f"v_xor_b32 v6, v6, v4")
    e(f"v_lshl_add_u32 v{vDV}, v6, 4, v5")
    e("s_waitcnt lgkmcnt(0)")
    def srd(d, p, n):
        e(f"s_mov_b32 s{d}, s{p}"); e(f"s_and_b32 s{d+1}, s{p+1}, 0xffff"); e(f"s_mov_b32 s{d+2}, {n}"); e(f"s_mov_b32 s{d+3}, 0x20000")
    srd(sKSRD, 6, 8388608); srd(sQSRD, 4, 16777216); srd(sVSRD, 32, 8388608); srd(sOSRD, 34, 16777216)
    g.lab("L_restart")
    for i in range(1, 4): e(f"v_xor_b32 v{vK+i}, {64*i}, v{vQO}")
    def dma_items(x):
        out = []
        if x[0] == "P":
            kind, t = x[1], int(x[2:])
            srdn = sKSRD if kind == "K" else sVSRD
            out.append(f"s_add_u32 s{sTMP}, s{sKVOFF}, {t*16384}")
            out.append((f"buffer_load_dword v{vPFD}, v{vPF}, s[{srdn}:{srdn+3}], s{sTMP} offen", x))
            return out
        if x[0] == "Q":
            half = 0 if x == "Qa" else 1
            out += [f"s_add_u32 m0, s{sSTG}, {4096*half}", f"s_add_u32 s{sTMP}, s{sQOFF}, {4096*half}"]
            for i in range(4):
                va = vQO if i == 0 else vK + i
                out.append((f"buffer_load_dwordx4 v{va}, s[{sQSRD}:{sQSRD+3}], s{sTMP} offen offset:{1024*i} {qflag} lds", x))
            return out
        kind, p = x[0], int(x[1:])
        base = (KBASE if kind == "K" else VBASE) + (p % R) * 16384
        srdn = sKSRD if kind == "K" else sVSRD
        out += [f"s_add_u32 m0, s{sW4K}, {base}", f"s_add_u32 s{sTMP}, s{sKVOFF}, {p*16384}"]
        for i in range(4):
            va = vDK + i if kind == "K" else vDV
            out.append((f"buffer_load_dwordx4 v{va}, s[{srdn}:{srdn+3}], s{sTMP} offen offset:{1024*i} {ldflag} lds", x))
        return out
    def emit_items(lst):
        for y in lst:
            if isinstance(y, tuple): e(y[0]); g.vm_issue(y[1])
            else: e(y)
    def dma(x): emit_items(dma_items(x))
    def guarded(lst):
        l = g.newlab("L_nd")
        e(f"s_cmp_lg_u32 s{sISB}, 0"); e(f"s_cbranch_scc1 {l}")
        emit_items(lst)
        g.lab(l)
    def addrs():
        e(f"v_and_b32 v4, 31, v{vB}")
        e(f"v_lshrrev_b32 v6, 5, v{vB}")
        e(f"v_and_b32 v5, 15, v4")
        e(f"v_xor_b32 v5, v5, v6")
        e(f"v_lshlrev_b32 v5, 4, v5")
        e(f"v_lshl_add_u32 v{vKA}, v4, 8, v5")
        for s in range(1, 8): e(f"v_xor_b32 v{vKA+s}, {32*s}, v{vKA}")
        e(f"v_bfe_u32 v4, v{vB}, 2, 2")
        e(f"v_lshl_add_u32 v5, v6, 2, v4")
        e(f"v_lshlrev_b32 v5, 8, v5")
        e(f"v_lshl_add_u32 v5, v4, 6, v5")
        e(f"v_bfe_u32 v4, v{vB}, 4, 1")
        e(f"v_lshl_add_u32 v5, v4, 5, v5")
        e(f"v_and_b32 v4, 3, v{vB}")
        e(f"v_lshl_add_u32 v5, v4, 3, v5")
        e(f"v_add_u32 v{vVA}, {VBASE}, v5")
        for db in range(1, 4): e(f"v_xor_b32 v{vVA+db}, {64*db}, v{vVA}")
        e(f"v_mov_b32 v{vL}, 0")
        e(f"v_lshlrev_b32 v{vOR}, 4, v{vB}")
        e(f"v_add_u32 v{vOR}, s{sSTG}, v{vOR}")
        e(f"v_and_b32 v4, 31, v{vB}")
        e(f"v_lshlrev_b32 v5, 7, v4")
        e(f"v_lshl_add_u32 v5, v6, 3, v5")
        e(f"v_and_b32 v4, 7, v4")
        e(f"v_lshl_add_u32 v5, v4, 4, v5")
        e(f"v_add_u32 v{vOW}, s{sSTG}, v5")
        e(f"v_lshrrev_b32 v4, 3, v{vB}")
        e(f"v_and_b32 v5, 7, v{vB}")
        e(f"v_xor_b32 v5, v5, v4")
        e(f"v_lshl_add_u32 v4, v{vA}, 5, v4")
        e(f"v_lshlrev_b32 v4, 8, v4")
        e(f"v_lshl_add_u32 v{vOS}, v5, 4, v4")
        for s in range(8): e(f"v_add_u32 v{vV+s}, s{sSTG}, v{vKA+s}")
    def qread():
        for s in range(8): e(f"ds_read_b128 v[{vQ+4*s}:{vQ+4*s+3}], v{vV+s}")
    needed_at = lambda j: {f"K{p}" for p in range(8) if needK(p) == j} | {f"V{p}" for p in range(8) if needV(p) == j}

    e(f"s_cmp_lg_u32 s{sISB}, 0")
    e("s_cbranch_scc1 L_proB")
    g.vm = []
    dma("K0"); dma("Qa"); dma("Qb")
    for x in schedA.get(-1, []): dma(x)
    addrs()
    if opt.prio: e(f"s_setprio {opt.prio}")
    g.vm_wait({"K0"})
    vmA = g.vm
    e("s_branch L_main")
    g.lab("L_proB")
    g.vm = []
    e(f"s_bfe_u32 s36, s2, 0x20003")
    e(f"s_lshl_b32 s36, s36, 12")
    e(f"s_lshl_b32 s37, s{sW4K}, 2")
    e(f"s_add_u32 s36, s36, s37")
    e(f"v_lshl_add_u32 v{vPF}, v{vB}, 6, s36")
    addrs()
    for x in schedB.get(-1, []): dma(x)
    for j in range(NS):
        g.vm_wait(needed_at(j))
        e("s_barrier")
        for x in schedB.get(j, []): dma(x)
    if opt.lateq:
        g.vm_wait(needed_at(NS))
        vmB = g.vm
    else:
        g.vm_wait({"Qa", "Qb"})
        qread()
        g.vm_wait({x for x in g.vm if x[0] != "P"})
        e("s_waitcnt lgkmcnt(0)")
    g.lab("L_main")
    g.vm = vmA
    st = {"K": 0, "V": 0}
    def rebias(kind, t):
        want = 65536 if (t % R) == 4 else 0
        if st[kind] != want:
            regs = [vKA + s for s in range(8)] if kind == "K" else [vVA + d for d in range(4)]
            for r_ in regs: e(f"v_add_u32 v{r_}, {65536 if want else -65536 & 0xffffffff}, v{r_}")
            st[kind] = want

    def kread(n, s):
        t, blk = n >> 1, n & 1
        return f"ds_read_b128 v[{vK+4*s}:{vK+4*s+3}], v{vKA+s} offset:{KBASE + (t % R) * 16384 + blk * 8192 - st['K']}"
    def vread(n, f, h):
        t, blk = n >> 1, n & 1
        j, db = (f >> 2, f & 3)
        return f"ds_read_b64_tr_b16 v[{vV+4*f+2*h}:{vV+4*f+2*h+1}], v{vVA+db} offset:{(t % R) * 16384 + (blk * 32 + 16 * j + 8 * h) * 256 - st['V']}"
    def qk(n, s):
        S = vS[n & 1]
        cin = "0" if s == 0 else f"v[{S}:{S+15}]"
        return f"v_mfma_f32_32x32x16_bf16 v[{S}:{S+15}], v[{vK+4*s}:{vK+4*s+3}], v[{vQ+4*s}:{vQ+4*s+3}], {cin}"
    def pv(n, f):
        j, db = (f >> 2, f & 3)
        O = vO + 16 * db; P = vP[n & 1] + 4 * j
        cin = "0" if (n == 0 and j == 0) else f"v[{O}:{O+15}]"
        return f"v_mfma_f32_32x32x16_bf16 v[{O}:{O+15}], v[{vV+4*f}:{vV+4*f+3}], v[{P}:{P+3}], {cin}"
    def fma(n, i): return f"v_fma_f32 v{vX[i&1]}, v{vS[n&1]+i}, s{sC}, -v{vMC}"
    def exp(n, i): return f"v_exp_f32 v{vT[i]}, v{vX[i&1]}"
    def add(n, i): return f"v_add_f32 v{vL}, v{vL}, v{vT[i]}"
    def cvt(n, i): return f"v_cvt_pk_bf16_f32 v{vP[n&1]+(i>>1)}, v{vT[i]}, v{vT[i+1]}"

    g.stamp()
    e("s_barrier")
    g.stamp()
    for s in range(8): e(kread(0, s))
    if opt.lateq:
        e(f"s_cmp_lg_u32 s{sISB}, 0"); e("s_cbranch_scc1 L_bq")
        g.vm_wait({"Qb"})
        e("s_branch L_haveq")
        g.lab("L_bq")
        g.vm = vmB
        for x in schedB.get(NS, []): dma(x)
        g.vm_wait({"Qa", "Qb"})
        nPF = 0
        while g.vm[-1 - nPF][0] == "P": nPF += 1
        g.vm = vmA
        g.lab("L_haveq")
        qread()
    else:
        e(f"s_cmp_lg_u32 s{sISB}, 0"); e("s_cbranch_scc1 L_haveq")
        g.vm_wait({"Qb"})
        qread()
        g.lab("L_haveq")
    e("s_waitcnt lgkmcnt(0)")
    g.stamp()
    for s in range(8):
        e(qk(0, s)); e(kread(1, s))
    S0 = vS[0]
    e("s_waitcnt lgkmcnt(4)")
    e(qk(1, 0)); e(qk(1, 1))
    e("s_nop 7")
    e(f"s_cmp_lg_u32 s{sREDO}, 0")
    e("s_cbranch_scc1 L_have_m")
    e(f"v_max3_f32 v{vM}, v{S0}, v{S0+1}, v{S0+2}")
    e(f"v_max3_f32 v4, v{S0+3}, v{S0+4}, v{S0+5}")
    e(f"v_max3_f32 v5, v{S0+6}, v{S0+7}, v{S0+8}")
    e(f"v_max3_f32 v6, v{S0+9}, v{S0+10}, v{S0+11}")
    e(f"v_max3_f32 v7, v{S0+12}, v{S0+13}, v{S0+14}")
    e(f"v_max3_f32 v{vM}, v{vM}, v4, v{S0+15}")
    e(f"v_max3_f32 v5, v5, v6, v7")
    e(f"v_max_f32 v{vM}, v{vM}, v5")
    e(f"v_mov_b32 v4, v{vM}")
    e("s_nop 1")
    e(f"v_permlane32_swap_b32 v{vM}, v4")
    e(f"v_max_f32 v{vM}, v{vM}, v4")
    g.lab("L_have_m")
    e(qk(1, 2))
    e(f"v_mul_f32 v{vMC}, s{sC}, v{vM}")
    e(fma(0, 0))
    def valu(n, gi):
        out = [exp(n, gi)]
        out.append(fma(n, gi + 1) if gi < 15 else (fma(n + 1, 0) if n < 15 else None))
        if gi >= 1: out.append(add(n, gi - 1))
        elif n >= 1: out.append(add(n - 1, 15))
        if n >= 1 and gi < 8:
            out.insert(0, cvt(n - 1, 0)) if gi == 0 else out.append(cvt(n - 1, 2 * gi))
        return [x for x in out if x]
    mf = [qk(1, s) for s in range(3, 8)]
    for gi in range(10):
        if gi % 2 == 0:
            if gi == 2: e("s_waitcnt lgkmcnt(0)")
            e(mf.pop(0))
        for x in valu(0, gi): e(x)
    if opt.lateq:
        assert all(x in needed_at(1) for x in schedA.get(-1, [])) and nPF == 0
        e("s_waitcnt vmcnt(0)")
    else:
        g.vm_wait(needed_at(1))
    e("s_barrier")
    assert not schedA.get(0) and not schedA.get(1)
    rd0 = [kread(2, s) for s in range(8)] + [vread(0, f, h) for f in range(8) for h in range(2)]
    for gi in range(10, 16):
        for _ in range(4): e(rd0.pop(0))
        for x in valu(0, gi): e(x)
    g.stamp()
    BG = opt.bgap
    pend = []
    for n in range(1, 15):
        kq = list(range(8)) if n < 14 else []
        hasbar = (n % 2 == 0)
        for gi in range(16):
            if gi == 0:
                e("s_waitcnt lgkmcnt(15)")
                if n < 14: rebias("K", (n + 2) >> 1)
            if gi == 8:
                if not (hasbar and n == 14): e("s_waitcnt lgkmcnt(8)")
                rebias("V", n >> 1)
            if hasbar and gi == BG:
                t = n // 2 + 1
                g.vm_wait(needed_at(t))
                e("s_waitcnt lgkmcnt(0)")
                e("s_barrier")
                for x in schedA.get(t, []):
                    it = dma_items(x)
                    k_ = len(it) - 3 if len(it) > 2 else len(it)
                    pend.append(it[:k_])
                    for y in it[k_:]: pend.append([y])
            if gi < 8:
                e(qk(n + 1, gi))
                if not hasbar or gi >= BG:
                    cnt = 0
                    while kq and kq[0] <= gi and cnt < 2:
                        e(kread(n + 2, kq.pop(0))); cnt += 1
            else:
                assert not kq
                e(pv(n - 1, gi - 8))
                e(vread(n, gi - 8, 0)); e(vread(n, gi - 8, 1))
            for x in valu(n, gi): e(x)
            if pend and gi % opt.spread == opt.spread - 1: guarded(pend.pop(0))
        if n % 2 == 1:
            for blk in pend: guarded(blk)
            pend = []
        if n % 2 == 0: g.stamp()
    assert not pend
    for k_ in range(4): e(cvt(14, 2 * k_))
    late = [cvt(14, 8 + 2 * k_) for k_ in range(4)]
    e(add(14, 15))
    vP[1] = vK + 24
    for gi in range(16):
        if gi % 2 == 0:
            f = gi // 2
            if f in (0, 4): e("s_waitcnt lgkmcnt(8)")
            e(pv(14, f)); e(vread(15, f, 0)); e(vread(15, f, 1))
        if late: e(late.pop(0))
        out = [exp(15, gi)]
        if gi < 15: out.append(fma(15, gi + 1))
        if gi >= 1: out.append(add(15, gi - 1))
        if gi % 2 == 0 and gi >= 2: out.append(cvt(15, gi - 2))
        for x in out: e(x)
    e(add(15, 15)); e(cvt(15, 14))
    g.stamp()
    def muls(db): return [f"v_mul_f32 v{vO+16*db+i}, v5, v{vO+16*db+i}" for i in range(16)]
    def pack(db):
        O = vO + 16 * db; Rr = vK + 8 * (db % 3); out = []
        for gq in range(4):
            out.append(f"v_cvt_pk_bf16_f32 v{Rr+2*gq}, v{O+4*gq}, v{O+4*gq+1}")
            out.append(f"v_cvt_pk_bf16_f32 v{Rr+2*gq+1}, v{O+4*gq+2}, v{O+4*gq+3}")
            ch = 4 * db + gq
            out.append(f"ds_write_b64 v{vKA+(ch&7)}, v[{Rr+2*gq}:{Rr+2*gq+1}] offset:{4096*(ch>>3)}")
        return out
    def rd(h): return [f"ds_read_b128 v[{vS[0]+16*h+4*i}:{vS[0]+16*h+4*i+3}], v{vOR} offset:{4096*h+1024*i}" for i in range(4)]
    def stv(h, i): return f"buffer_store_dwordx4 v[{vS[0]+16*h+4*i}:{vS[0]+16*h+4*i+3}], v{vOS}, s[{sOSRD}:{sOSRD+3}], s{sQOFF if i < 2 else sT2} offen offset:{128*h+2048*(i&1)} {stflag}"
    e(f"v_mov_b32 v4, v{vL}")
    e("s_waitcnt lgkmcnt(6)")
    e(pv(15, 0))
    e(f"v_permlane32_swap_b32 v{vL}, v4")
    e(f"s_mov_b32 s{sTMP}, 0x{f32bits(2.0**30):08x}")
    e(f"v_add_f32 v{vL}, v{vL}, v4")
    e(f"v_rcp_f32 v5, v{vL}")
    e(pv(15, 4))
    e(f"v_cmp_nge_f32 vcc, s{sTMP}, v{vL}")
    e(f"v_mov_b32 v{vKA}, v{vOW}")
    for i in range(1, 4): e(f"v_xor_b32 v{vKA+i}, {16*i}, v{vOW}")
    e("s_waitcnt lgkmcnt(0)")
    nearly = 0
    if opt.early9:
        guarded(["s_barrier"]); nearly += 1
    e(pv(15, 1))
    for i in range(4, 8): e(f"v_xor_b32 v{vKA+i}, {16*i}, v{vOW}")
    e(f"s_add_u32 s{sT2}, s{sQOFF}, 4096")
    e(pv(15, 5))
    q_ = muls(0) + pack(0)
    ms = [pv(15, 2), pv(15, 6), pv(15, 3), pv(15, 7)]
    for k_, x in enumerate(q_):
        e(x)
        if k_ % 6 == 5 and ms: e(ms.pop(0))
    if opt.prio: e("s_setprio 0")
    e("s_cmp_lg_u64 vcc, 0")
    e(f"s_cselect_b32 s{sFLAG}, 1, 0")
    for x in muls(1) + pack(1): e(x)
    m2 = muls(2)
    for x in m2[:8]: e(x)
    e("s_waitcnt lgkmcnt(0)")
    for x in rd(0): e(x)
    for x in m2[8:] + pack(2)[:6]: e(x)
    e("s_waitcnt lgkmcnt(2)")
    p2 = pack(2)[6:]; m3 = muls(3)
    e(stv(0, 0))
    for x in p2[:3]: e(x)
    e(stv(0, 1))
    for x in p2[3:]: e(x)
    e(stv(0, 2))
    for x in m3[:8]: e(x)
    e(stv(0, 3))
    for x in m3[8:] + pack(3): e(x)
    e("s_waitcnt lgkmcnt(0)")
    for x in rd(1): e(x)
    for i in range(4):
        e(f"s_waitcnt lgkmcnt({3-i})"); e(stv(1, i))
    g.stamp()
    e(f"s_cmp_lg_u32 s{sISB}, 0"); e("s_cbranch_scc1 L_fb")
    for j in range(NS - nearly): e("s_barrier")
    g.lab("L_fb")
    e(f"s_lshl_b32 s{sT2}, s{sWID}, 2")
    e(f"v_mov_b32 v4, s{sT2}")
    e(f"v_mov_b32 v6, s{sFLAG}")
    e(f"ds_write_b32 v4, v6 offset:{FLAG_OFF}")
    e("s_waitcnt lgkmcnt(0)")
    e("s_barrier")
    e(f"v_and_b32 v4, 7, v{vB}")
    e("v_lshlrev_b32 v4, 2, v4")
    e(f"ds_read_b32 v6, v4 offset:{FLAG_OFF}")
    e("s_waitcnt lgkmcnt(0)")
    e("v_cmp_ne_u32 vcc, 0, v6")
    e(f"s_cmp_lg_u32 s{sREDO}, 0")
    e("s_cbranch_scc1 L_fin")
    e("s_cbranch_vccnz L_redo")
    g.lab("L_fin")
    if opt.probe is not None:
        e("s_waitcnt vmcnt(0)")
        g.stamp()
        e("s_waitcnt lgkmcnt(0)")
        e("s_sub_u32 s64, s62, s60")
        if opt.probegrp:
            e(f"s_cmp_eq_u32 s{sISB}, {0 if opt.probegrp == 'A' else 1}")
            e("s_cselect_b32 s64, s64, 0")
        e("s_add_u32 s64, s64, 6000")
        g.lab("L_dly")
        e("s_sleep 2")
        e("s_memrealtime s[66:67]"); e("s_waitcnt lgkmcnt(0)"); e("s_sub_u32 s65, s66, s60"); e("s_cmp_lt_u32 s65, s64"); e("s_cbranch_scc1 L_dly")
    if opt.stamps:
        e("s_waitcnt vmcnt(0)")
        g.stamp()
        e("s_memrealtime s[48:49]")
        e("s_waitcnt lgkmcnt(0)")
        e(f"s_lshl_b32 s36, s2, 3"); e(f"s_add_u32 s36, s36, s{sWID}"); e("s_lshl_b32 s36, s36, 7")
        e("v_mov_b32 v4, s36")
        e("v_cmp_eq_u32 vcc, 0, v2"); e("s_and_saveexec_b64 s[42:43], vcc")
        e("v_mov_b32 v6, s46"); e("global_store_dword v4, v6, s[44:45] offset:0")
        e("v_mov_b32 v6, s48"); e("global_store_dword v4, v6, s[44:45] offset:4")
        for i in range(1, g.nstamp):
            e(f"s_sub_u32 s36, s{50+2*i}, s50"); e("v_mov_b32 v6, s36"); e(f"global_store_dword v4, v6, s[44:45] offset:{4+4*i}")
        e("s_waitcnt vmcnt(0)")
    g.lab("L_end")
    e("s_endpgm")
    g.lab("L_redo")
    e("s_barrier")
    e(f"s_mov_b32 s{sREDO}, 1")
    e(f"v_and_b32 v4, 31, v{vB}"); e(f"v_lshrrev_b32 v6, 5, v{vB}")
    e(f"v_lshlrev_b32 v4, 8, v4"); e(f"v_lshl_add_u32 v4, v6, 4, v4")
    e(f"v_mov_b32 v{vM}, 0xff800000")
    e(f"s_mov_b32 s{sT2}, s{sKVOFF}")
    e(f"s_add_u32 s38, s{sKVOFF}, 131072")
    g.lab("L_redo_loop")
    e("s_waitcnt vmcnt(0)")
    for s in range(8):
        e(f"buffer_load_dwordx4 v[{vK+4*s}:{vK+4*s+3}], v4, s[{sKSRD}:{sKSRD+3}], s{sT2} offen offset:{32*s}")
    e("s_waitcnt vmcnt(0)")
    for s in range(8): e(qk(0, s))
    e("s_nop 15"); e("s_nop 7")
    for i in range(0, 16, 2): e(f"v_max3_f32 v{vM}, v{vM}, v{S0+i}, v{S0+i+1}")
    e(f"s_add_u32 s{sT2}, s{sT2}, 8192")
    e(f"s_cmp_lt_u32 s{sT2}, s38")
    e("s_cbranch_scc1 L_redo_loop")
    e(f"v_mov_b32 v4, v{vM}")
    e("s_nop 1")
    e(f"v_permlane32_swap_b32 v{vM}, v4")
    e(f"v_max_f32 v{vM}, v{vM}, v4")
    e("s_branch L_restart")
    g.L.append('.section .rodata,"a"'); g.L.append(".p2align 6"); g.L.append(f".amdhsa_kernel {KNAME}")
    for l in [f".amdhsa_next_free_vgpr {NV}", ".amdhsa_next_free_sgpr 102", f".amdhsa_accum_offset {NV}", ".amdhsa_group_segment_fixed_size 0",
              ".amdhsa_kernarg_size 48", ".amdhsa_user_sgpr_count 2", ".amdhsa_user_sgpr_kernarg_segment_ptr 1", ".amdhsa_system_sgpr_workgroup_id_x 1"]:
        g.L.append("  " + l)
    g.L.append(".end_amdhsa_kernel")
    g.L.append(f"; nstamp={g.nstamp}")
    return "\n".join(g.L) + "\n"

if __name__ == "__main__":
    ap = argparse.ArgumentParser()
    ap.add_argument("-o", default="standalone__gqa_softmax__near_ridge.s")
    ap.add_argument("--skew", type=int, default=3)
    ap.add_argument("--schedB", default="-1:K1,V0 0:K2,V1 1:Qa,Qb,K3,V2 2:K4,PK4,PV4")
    ap.add_argument("--schedA", default="3:V3,V4 4:K5 5:K6,V5 6:K7,V6 7:V7")
    ap.add_argument("--lateq", type=int, default=0)
    ap.add_argument("--probegrp", default="")
    ap.add_argument("--spread", type=int, default=1)
    ap.add_argument("--early9", action="store_true")
    ap.add_argument("--pfstride", type=int, default=64)
    ap.add_argument("--bgap", type=int, default=2)
    ap.add_argument("--prio", type=int, default=0)
    ap.add_argument("--stamps", action="store_true")
    ap.add_argument("--rt", action="store_true")
    ap.add_argument("--probe", type=int, default=None)
    ap.add_argument("--ldflag", default="")
    ap.add_argument("--qflag", default="")
    ap.add_argument("--stflag", default="sc0 sc1 nt")
    opt = ap.parse_args()
    open(opt.o, "w").write(build(opt))
```

```python
import sys, math, argparse, struct

KNAME = "standalone__gqa_softmax__near_ridge_kernel"
C_SCALE = (128 ** -0.5) * math.log2(math.e)
def f32bits(x): return struct.unpack("<I", struct.pack("<f", x))[0]

class Gen:
    def __init__(self, opt):
        self.o = opt; self.L = []; self.vm = []; self.nstamp = 0; self.nlab = 0
    def e(self, s): self.L.append("    " + s)
    def lab(self, s): self.L.append(s + ":")
    def newlab(self, p="L"):
        self.nlab += 1; return f"{p}_{self.nlab}"
    def vm_issue(self, tag): self.vm.append(tag)
    def vm_wait(self, tags):
        idx = [i for i, t in enumerate(self.vm) if t in tags]
        if not idx: return
        self.e(f"s_waitcnt vmcnt({min(63, len(self.vm) - 1 - max(idx))})")
    def stamp(self):
        if self.o.probe is not None:
            i = self.nstamp; self.nstamp += 1
            if i == 0: self.e("s_memrealtime s[60:61]")
            if i == self.o.probe: self.e("s_memrealtime s[62:63]")
            return
        if not self.o.stamps: return
        i = self.nstamp; self.nstamp += 1
        assert i < 24
        self.e(f"{'s_memrealtime' if self.o.rt else 's_memtime'} s[{50+2*i}:{51+2*i}]")

def parse_sched(txt):
    d = {}
    for tok in txt.replace("_", " ").split():
        j, lst = tok.split(":")
        d[int(j)] = [x for x in lst.split(",") if x]
    return d

def build(opt):
    g = Gen(opt); e = g.e
    R = 5; NS = opt.skew; PRE = opt.prescale; DEF = opt.defer
    KBASE = 0; VBASE = R * 16384
    lds_bytes = 163840
    FLAG_OFF = 0
    ldflag = opt.ldflag; qflag = opt.qflag; stflag = opt.stflag
    needK = lambda p: p
    needV = lambda p: p + 1
    schedB = parse_sched(opt.schedB)
    schedA = parse_sched(opt.schedA)
    when = {}
    for d in (schedB, schedA):
        for j, l in d.items():
            for x in l:
                assert x not in when; when[x] = j
    qdirect = "QD" in when
    for p in range(8):
        if p > 0:
            w_ = when[f"K{p}"]
            assert w_ < needK(p) and (p < 5 or w_ >= p - 4 + NS) and (p not in (3, 4) or w_ >= 1), f"K{p}"
        w_ = when[f"V{p}"]
        assert w_ < needV(p) and (p < 5 or w_ >= p - 3 + NS) and (qdirect or p not in (3, 4) or w_ >= NS + 1), f"V{p}"
    assert all(j <= NS + 1 for j in schedB) and all(j >= 2 for j in schedA)
    for j, l in schedB.items():
        pass
    sKSRD, sVSRD, sQSRD, sOSRD = 8, 12, 16, 20
    sW4K = 24; sKVOFF = 25; sQOFF = 26; sC = 27; sREDO = 28; sTMP = 29; sWID = 30; sT2 = 31; sSTG = 39; sISB = 40; sFLAG = 41
    vLANE = 0; t0, t1, t2 = 1, 2, 3
    vQ = 4; vO = 36; vS = [100, 116]; vK = 148; vV = 180
    vL = 232; vM = 233; vKA = 234; vVA = 242; vDK = 246; vDV = 250
    if PRE:
        vP = [132, 140]; vNM = 212; vT = [228, 229, 230, 231]
    else:
        vP = [132, 132]; vT = list(range(212, 228)); vX = [228, 229]; vMC = 230
    NT = len(vT)
    vOR = vDK; vOS = vDK + 1
    NV = 252

    g.L.append(f"; GQA attention fwd: B8 Hq32 Hkv8 Sq256 Sk512 D128 bf16. generated by gen7.py {' '.join(sys.argv[1:])}")
    g.L.append(f"; @launch grid=(256,1,1) block=(512,1,1) lds={lds_bytes}")
    g.L.append('.amdgcn_target "amdgcn-amd-amdhsa--gfx950"')
    g.L.append(".text"); g.L.append(f".globl {KNAME}"); g.L.append(".p2align 8"); g.L.append(f".type {KNAME},@function")
    g.lab(KNAME)
    e("s_load_dwordx4 s[4:7], s[0:1], 0")
    e("s_load_dwordx4 s[32:35], s[0:1], 16")
    g.stamp()
    if opt.stamps: e("s_memrealtime s[46:47]"); e("s_load_dwordx2 s[44:45], s[0:1], 40")
    e("s_cmp_ge_u32 s2, 256")
    e("s_cbranch_scc1 L_end")
    e(f"v_lshrrev_b32 v{t0}, 6, v0")
    e(f"v_and_b32 v{vLANE}, 63, v0")
    e(f"v_readfirstlane_b32 s{sWID}, v{t0}")
    e("s_and_b32 s36, s2, 7")
    e("s_lshr_b32 s37, s2, 3")
    e("s_lshl_b32 s38, s36, 5")
    e("s_add_u32 s38, s38, s37")
    e(f"s_lshl_b32 s{sQOFF}, s38, 16")
    e("s_lshl_b32 s38, s36, 3")
    e("s_lshr_b32 s37, s37, 2")
    e("s_add_u32 s38, s38, s37")
    e(f"s_lshl_b32 s{sKVOFF}, s38, 17")
    e(f"s_mov_b32 s{sREDO}, 0")
    e(f"s_mov_b32 s{sC}, 0x{f32bits(C_SCALE):08x}")
    e(f"s_lshl_b32 s36, s{sWID}, 13")
    e(f"s_add_u32 s{sQOFF}, s{sQOFF}, s36")
    e(f"s_and_b32 s36, s{sWID}, 3")
    e(f"s_lshl_b32 s{sW4K}, s36, 12")
    e(f"s_lshr_b32 s{sISB}, s{sWID}, 2")
    e(f"s_lshl_b32 s{sSTG}, s36, 13")
    e(f"s_mul_i32 s{sTMP}, s{sISB}, {VBASE}")
    e(f"s_add_u32 s{sSTG}, s{sSTG}, s{sTMP}")
    e(f"s_add_u32 s{sSTG}, s{sSTG}, {3*16384}")
    def srd(d, p, n):
        e(f"s_mov_b32 s{d}, s{p}"); e(f"s_and_b32 s{d+1}, s{p+1}, 0xffff"); e(f"s_mov_b32 s{d+2}, {n}"); e(f"s_mov_b32 s{d+3}, 0x20000")
    first = [True]
    g.lab("L_restart")
    e(f"v_lshrrev_b32 v{t0}, 4, v{vLANE}")
    e(f"v_and_b32 v{t1}, 15, v{vLANE}")
    e(f"v_xor_b32 v{t2}, v{t0}, v{t1}")
    e(f"v_lshlrev_b32 v{vDV}, 8, v{t0}")
    e(f"v_lshl_add_u32 v{vDK}, v{t2}, 4, v{vDV}")
    for p in range(1, 4): e(f"v_xor_b32 v{vDK+p}, {64*p}, v{vDK}")
    e(f"v_lshlrev_b32 v{t2}, 2, v{t0}")
    e(f"v_xor_b32 v{t2}, v{t2}, v{t1}")
    e(f"v_lshl_add_u32 v{vDV}, v{t2}, 4, v{vDV}")
    e(f"s_add_u32 s38, s{sKVOFF}, s{sW4K}")
    e("s_waitcnt lgkmcnt(0)")
    srd(sKSRD, 6, 8388608); srd(sQSRD, 4, 16777216); srd(sVSRD, 32, 8388608); srd(sOSRD, 34, 16777216)
    def dma_items(x):
        out = []
        if x == "QD":
            out += [f"v_and_b32 v{t0}, 31, v{vLANE}", f"v_lshrrev_b32 v{t1}, 5, v{vLANE}", f"v_lshlrev_b32 v{t0}, 8, v{t0}", f"v_lshl_add_u32 v{t0}, v{t1}, 4, v{t0}"]
            for s in range(8):
                out.append((f"buffer_load_dwordx4 v[{vQ+4*s}:{vQ+4*s+3}], v{t0}, s[{sQSRD}:{sQSRD+3}], s{sQOFF} offen offset:{32*s} {qflag}", x))
            return out
        if x[0] == "Q":
            half = 0 if x == "Qa" else 1
            out += [f"s_add_u32 m0, s{sSTG}, {4096*half}", f"s_add_u32 s{sTMP}, s{sQOFF}, {4096*half}"]
            for i in range(4):
                out.append((f"buffer_load_dwordx4 v{vDK+i}, s[{sQSRD}:{sQSRD+3}], s{sTMP} offen offset:{1024*i} {qflag} lds", x))
            return out
        kind, p = x[0], int(x[1:])
        base = (KBASE if kind == "K" else VBASE) + (p % R) * 16384
        srdn = sKSRD if kind == "K" else sVSRD
        out += [f"s_add_u32 m0, s{sW4K}, {base}", f"s_add_u32 s{sTMP}, s38, {p*16384}"]
        for i in range(4):
            va = vDK + i if kind == "K" else vDV
            out.append((f"buffer_load_dwordx4 v{va}, s[{srdn}:{srdn+3}], s{sTMP} offen offset:{1024*i} {ldflag} lds", x))
        return out
    def emit_items(lst):
        for y in lst:
            if isinstance(y, tuple): e(y[0]); g.vm_issue(y[1])
            else: e(y)
    def dma(x): emit_items(dma_items(x))
    def guarded(lst):
        l = g.newlab("L_nd")
        e(f"s_cmp_lg_u32 s{sISB}, 0"); e(f"s_cbranch_scc1 {l}")
        emit_items(lst)
        g.lab(l)
    def addrs():
        e(f"v_and_b32 v{t0}, 31, v{vLANE}")
        e(f"v_lshrrev_b32 v{t2}, 5, v{vLANE}")
        e(f"v_and_b32 v{t1}, 15, v{t0}")
        e(f"v_xor_b32 v{t1}, v{t1}, v{t2}")
        e(f"v_lshlrev_b32 v{t1}, 4, v{t1}")
        e(f"v_lshl_add_u32 v{vKA}, v{t0}, 8, v{t1}")
        for s in range(1, 8): e(f"v_xor_b32 v{vKA+s}, {32*s}, v{vKA}")
        e(f"v_bfe_u32 v{t0}, v{vLANE}, 2, 2")
        e(f"v_lshl_add_u32 v{t1}, v{t2}, 2, v{t0}")
        e(f"v_lshlrev_b32 v{t1}, 8, v{t1}")
        e(f"v_lshl_add_u32 v{t1}, v{t0}, 6, v{t1}")
        e(f"v_bfe_u32 v{t0}, v{vLANE}, 4, 1")
        e(f"v_lshl_add_u32 v{t1}, v{t0}, 5, v{t1}")
        e(f"v_and_b32 v{t0}, 3, v{vLANE}")
        e(f"v_lshl_add_u32 v{t1}, v{t0}, 3, v{t1}")
        e(f"v_add_u32 v{vVA}, {VBASE}, v{t1}")
        for db in range(1, 4): e(f"v_xor_b32 v{vVA+db}, {64*db}, v{vVA}")
        e(f"v_mov_b32 v{vL}, 0")
        for s in range(8): e(f"v_add_u32 v{vV+s}, s{sSTG}, v{vKA+s}")
    def qread():
        for s in range(8): e(f"ds_read_b128 v[{vQ+4*s}:{vQ+4*s+3}], v{vV+s}")
    needed_at = lambda j: {f"K{p}" for p in range(8) if needK(p) == j} | {f"V{p}" for p in range(8) if needV(p) == j}

    e(f"s_cmp_lg_u32 s{sISB}, 0")
    e("s_cbranch_scc1 L_proB")
    g.vm = []
    dma("K0"); dma("Qa"); dma("Qb")
    addrs()
    if opt.prio: e(f"s_setprio {opt.prio}")
    g.vm_wait({"K0"})
    vmA = g.vm
    e("s_branch L_main")
    g.lab("L_proB")
    g.vm = []
    addrs()
    for x in schedB.get(-1, []): dma(x)
    for j in range(NS):
        g.vm_wait(needed_at(j))
        e("s_barrier")
        for x in schedB.get(j, []): dma(x)
    g.vm_wait(needed_at(NS))
    vmB = g.vm
    g.lab("L_main")
    g.vm = vmA
    st = {"K": 0, "V": 0}
    def rebias(kind, t):
        want = 65536 if (t % R) == 4 else 0
        if st[kind] != want:
            regs = [vKA + s for s in range(8)] if kind == "K" else [vVA + d for d in range(4)]
            for r_ in regs: e(f"v_add_u32 v{r_}, {65536 if want else -65536 & 0xffffffff}, v{r_}")
            st[kind] = want
    def kread(n, s):
        t, blk = n >> 1, n & 1
        return f"ds_read_b128 v[{vK+4*s}:{vK+4*s+3}], v{vKA+s} offset:{KBASE + (t % R) * 16384 + blk * 8192 - st['K']}"
    def vread(n, f, h, dst=None):
        t, blk = n >> 1, n & 1
        j, db = (f >> 2, f & 3)
        d = (vV + 4 * f if dst is None else dst) + 2 * h
        return f"ds_read_b64_tr_b16 v[{d}:{d+1}], v{vVA+db} offset:{(t % R) * 16384 + (blk * 32 + 16 * j + 8 * h) * 256 - st['V']}"
    def qk(n, s):
        S = vS[n & 1]
        cin = f"v[{S}:{S+15}]" if s else (f"v[{vNM}:{vNM+15}]" if (PRE and n >= 2) else "0")
        return f"v_mfma_f32_32x32x16_bf16 v[{S}:{S+15}], v[{vK+4*s}:{vK+4*s+3}], v[{vQ+4*s}:{vQ+4*s+3}], {cin}"
    Pbuf = {n: vP[n & 1] for n in range(16)}
    if DEF:
        assert PRE
        Pbuf[14] = vV + 8; Pbuf[15] = vV + 24
    elif not PRE:
        Pbuf[15] = vK + 24
    def pv(n, f, src=None):
        j, db = (f >> 2, f & 3)
        O = vO + 16 * db; P = Pbuf[n] + 4 * j
        a = vV + 4 * f if src is None else src
        cin = "0" if (n == 0 and j == 0) else f"v[{O}:{O+15}]"
        return f"v_mfma_f32_32x32x16_bf16 v[{O}:{O+15}], v[{a}:{a+3}], v[{P}:{P+3}], {cin}"
    def pre(n, i):
        if not PRE: return f"v_fma_f32 v{vX[i&1]}, v{vS[n&1]+i}, s{sC}, -v{vMC}"
        if n < 2: return f"v_sub_f32 v{vS[n&1]+i}, v{vS[n&1]+i}, v{vM}"
        return None
    def exp(n, i): return f"v_exp_f32 v{vT[i%NT]}, v{vS[n&1]+i if PRE else vX[i&1]}"
    def add(n, i): return f"v_add_f32 v{vL}, v{vL}, v{vT[i%NT]}"
    def cvt(n, i): return f"v_cvt_pk_bf16_f32 v{Pbuf[n]+(i>>1)}, v{vT[i%NT]}, v{vT[(i+1)%NT]}"
    def scaleq(s):
        out = []
        for r_ in range(vQ + 4 * s, vQ + 4 * s + 4):
            out += [f"v_lshlrev_b32 v{t0}, 16, v{r_}", f"v_and_b32 v{t1}, 0xffff0000, v{r_}",
                    f"v_mul_f32 v{t0}, s{sC}, v{t0}", f"v_mul_f32 v{t1}, s{sC}, v{t1}", f"v_cvt_pk_bf16_f32 v{r_}, v{t0}, v{t1}"]
        return out

    def both_wait(t):
        n = 63
        for vm, j in ((vmA, t), (vmB, t + NS)):
            idx = [i for i, x in enumerate(vm) if x in needed_at(j)]
            if idx: n = min(n, len(vm) - 1 - max(idx))
        if n < 63: e(f"s_waitcnt vmcnt({n})")
    g.stamp()
    e("s_barrier")
    g.stamp()
    for s in range(8): e(kread(0, s))
    e(f"s_cmp_lg_u32 s{sISB}, 0"); e("s_cbranch_scc1 L_bq")
    g.vm_wait({"Qb"})
    if qdirect: qread()
    e("s_branch L_haveq")
    g.lab("L_bq")
    g.vm = vmB
    for x in schedB.get(NS, []): dma(x)
    g.vm_wait({"Qa", "Qb", "QD"})
    g.vm = vmA
    g.lab("L_haveq")
    if not qdirect: qread()
    e("s_waitcnt lgkmcnt(0)")
    g.stamp()
    S0 = vS[0]
    if PRE:
        for x in scaleq(0): e(x)
        for s in range(8):
            nxt = scaleq(s + 1) if s < 7 else ["s_nop 0"]
            e(nxt[0]); e(nxt[1] if len(nxt) > 1 else "s_nop 0")
            e(qk(0, s)); e(kread(1, s))
            for x in nxt[2:]: e(x)
    else:
        for s in range(8):
            e(qk(0, s)); e(kread(1, s))
    e("s_waitcnt lgkmcnt(4)")
    e(qk(1, 0)); e(qk(1, 1))
    e("s_nop 7")
    e(f"s_cmp_lg_u32 s{sREDO}, 0")
    e("s_cbranch_scc1 L_have_m")
    u = vV + 8
    e(f"v_max3_f32 v{vM}, v{S0}, v{S0+1}, v{S0+2}")
    e(f"v_max3_f32 v{u}, v{S0+3}, v{S0+4}, v{S0+5}")
    e(f"v_max3_f32 v{u+1}, v{S0+6}, v{S0+7}, v{S0+8}")
    e(f"v_max3_f32 v{u+2}, v{S0+9}, v{S0+10}, v{S0+11}")
    e(f"v_max3_f32 v{u+3}, v{S0+12}, v{S0+13}, v{S0+14}")
    e(f"v_max3_f32 v{vM}, v{vM}, v{u}, v{S0+15}")
    e(f"v_max3_f32 v{u+1}, v{u+1}, v{u+2}, v{u+3}")
    e(f"v_max_f32 v{vM}, v{vM}, v{u+1}")
    e(f"v_mov_b32 v{u}, v{vM}")
    e("s_nop 1")
    e(f"v_permlane32_swap_b32 v{vM}, v{u}")
    e(f"v_max_f32 v{vM}, v{vM}, v{u}")
    g.lab("L_have_m")
    e(qk(1, 2))
    if not PRE: e(f"v_mul_f32 v{vMC}, s{sC}, v{vM}")
    e(pre(0, 0))
    def valu(n, gi):
        out = [exp(n, gi)]
        out.append(pre(n, gi + 1) if gi < 15 else (pre(n + 1, 0) if n < 15 else None))
        if gi >= 1: out.append(add(n, gi - 1))
        elif n >= 1: out.append(add(n - 1, 15))
        if PRE:
            if gi % 2 == 0:
                if gi >= 2: out.append(cvt(n, gi - 2))
                elif n >= 1: out.append(cvt(n - 1, 14))
        elif n >= 1 and gi < 8:
            out.insert(0, cvt(n - 1, 0)) if gi == 0 else out.append(cvt(n - 1, 2 * gi))
        return [x for x in out if x]
    mf = [qk(1, s) for s in range(3, 8)]
    for gi in range(10):
        if gi % 2 == 0:
            if gi == 2: e("s_waitcnt lgkmcnt(0)")
            e(mf.pop(0))
        for x in valu(0, gi): e(x)
    both_wait(1)
    e("s_barrier")
    if schedB.get(NS + 1):
        e(f"s_cmp_eq_u32 s{sISB}, 0"); e("s_cbranch_scc1 L_noB1")
        g.vm = vmB
        for x in schedB[NS + 1]: dma(x)
        g.vm = vmA
        g.lab("L_noB1")
    rd0 = [kread(2, s) for s in range(8)] + [vread(0, f, h) for f in range(8) for h in range(2)]
    nm = [f"v_sub_f32 v{vNM+i}, 0, v{vM}" for i in range(16)] if PRE else []
    for gi in range(10, 16):
        for _ in range(4): e(rd0.pop(0))
        for _ in range(3):
            if nm: e(nm.pop(0))
        for x in valu(0, gi): e(x)
    g.stamp()
    BG = opt.bgap
    pend = []
    keepf = lambda n: [f for f in range(8) if not (DEF and n >= 12 and (f & 3) >= 2)]
    def epi_addrs():
        o = [f"v_and_b32 v{t0}, 31, v{vLANE}", f"v_lshrrev_b32 v{t2}, 5, v{vLANE}", f"v_lshlrev_b32 v{t1}, 7, v{t0}",
             f"v_lshl_add_u32 v{t1}, v{t2}, 3, v{t1}", f"v_and_b32 v{t0}, 7, v{t0}", f"v_lshl_add_u32 v{t1}, v{t0}, 4, v{t1}",
             f"v_add_u32 v{vKA}, s{sSTG}, v{t1}"]
        o += [f"v_xor_b32 v{vKA+i}, {16*i}, v{vKA}" for i in range(1, 8)]
        o += [f"v_lshlrev_b32 v{vOR}, 4, v{vLANE}", f"v_add_u32 v{vOR}, s{sSTG}, v{vOR}",
              f"v_lshrrev_b32 v{t0}, 3, v{vLANE}", f"v_and_b32 v{t1}, 7, v{vLANE}", f"v_xor_b32 v{t1}, v{t1}, v{t0}",
              f"v_lshlrev_b32 v{t0}, 8, v{t0}", f"v_lshl_add_u32 v{vOS}, v{t1}, 4, v{t0}", f"s_add_u32 s{sT2}, s{sQOFF}, 4096"]
        return o
    for n in range(1, 15):
        kq = list(range(8)) if n < 14 else []
        hasbar = (n % 2 == 0)
        pvs = keepf(n - 1); vrs = keepf(n)
        nm_ = 8 + len(pvs)
        done = 0
        for mi in range(nm_):
            if mi == 0:
                if n == opt.prioslot: e("s_setprio 1")
                e(f"s_waitcnt lgkmcnt({min(15, 2*len(pvs))})")
                if n < 14: rebias("K", (n + 2) >> 1)
            if mi == 8:
                if n < 14: e("s_waitcnt lgkmcnt(8)")
                elif opt.notail: e("s_waitcnt lgkmcnt(0)")
                rebias("V", n >> 1)
            if hasbar and mi == BG:
                t = n // 2 + 1
                if opt.notail and t >= 9 - NS:
                    l_ = g.newlab("L_nb")
                    e(f"s_cmp_lg_u32 s{sISB}, 0"); e(f"s_cbranch_scc1 {l_}")
                    g.vm_wait(needed_at(t))
                    e("s_waitcnt lgkmcnt(0)")
                    e("s_barrier")
                    g.lab(l_)
                else:
                    both_wait(t)
                    e("s_waitcnt lgkmcnt(0)")
                    e("s_barrier")
                for x in schedA.get(t, []):
                    it = dma_items(x)
                    pend.append(it[:3])
                    for y in it[3:]: pend.append([y])
            if mi < 8:
                e(qk(n + 1, mi))
                if not hasbar or mi >= BG:
                    cnt = 0
                    while kq and kq[0] <= mi and cnt < 2:
                        e(kread(n + 2, kq.pop(0))); cnt += 1
            else:
                assert not kq
                f = pvs[mi - 8]
                e(pv(n - 1, f))
                if f in vrs: e(vread(n, f, 0)); e(vread(n, f, 1))
            upto = ((mi + 1) * 16 + nm_ - 1) // nm_
            while done < upto:
                for x in valu(n, done): e(x)
                done += 1
            if pend and mi % opt.spread == opt.spread - 1: guarded(pend.pop(0))
        if n % 2 == 1:
            for blk in pend: guarded(blk)
            pend = []
        if n % 2 == 0 and not (opt.fineepi and n < 14): g.stamp()
    assert not pend
    def muls(db):
        if opt.pkmul: return [f"v_pk_mul_f32 v[{vO+16*db+i}:{vO+16*db+i+1}], v[{vO+16*db+i}:{vO+16*db+i+1}], v[{t2-1}:{t2}] op_sel_hi:[1,0]" for i in range(0, 16, 2)]
        return [f"v_mul_f32 v{vO+16*db+i}, v{t1}, v{vO+16*db+i}" for i in range(16)]
    def pack(db, Rr):
        O = vO + 16 * db; out = []
        for gq in range(4):
            out.append(f"v_cvt_pk_bf16_f32 v{Rr+2*gq}, v{O+4*gq}, v{O+4*gq+1}")
            out.append(f"v_cvt_pk_bf16_f32 v{Rr+2*gq+1}, v{O+4*gq+2}, v{O+4*gq+3}")
            ch = 4 * db + gq
            out.append(f"ds_write_b64 v{vKA+(ch&7)}, v[{Rr+2*gq}:{Rr+2*gq+1}] offset:{4096*(ch>>3)}")
        return out
    def rd(h, D): return [f"ds_read_b128 v[{D+4*i}:{D+4*i+3}], v{vOR} offset:{4096*h+1024*i}" for i in range(4)]
    def stv(h, i, D): return f"buffer_store_dwordx4 v[{D+4*i}:{D+4*i+3}], v{vOS}, s[{sOSRD}:{sOSRD+3}], s{sQOFF if i < 2 else sT2} offen offset:{128*h+2048*(i&1)} {stflag}"
    def lred():
        return [f"v_permlane32_swap_b32 v{vL}, v{t0}", f"s_mov_b32 s{sTMP}, 0x{f32bits(2.0**30):08x}", f"v_add_f32 v{vL}, v{vL}, v{t0}",
                f"v_rcp_f32 v{t1}, v{vL}", f"v_cmp_nge_f32 vcc, s{sTMP}, v{vL}"]
    if not DEF:
        ea = epi_addrs()
        if not PRE:
            for k_ in range(4): e(cvt(14, 2 * k_))
            late = [cvt(14, 8 + 2 * k_) for k_ in range(4)]
            e(add(14, 15))
        for gi in range(16):
            if gi % 2 == 0:
                f = gi // 2
                if f in (0, 4): e("s_waitcnt lgkmcnt(8)")
                e(pv(14, f)); e(vread(15, f, 0)); e(vread(15, f, 1))
            if PRE:
                for x in valu(15, gi): e(x)
                for _ in range(2):
                    if ea: e(ea.pop(0))
            else:
                if late: e(late.pop(0))
                out = [exp(15, gi)]
                if gi < 15: out.append(pre(15, gi + 1))
                if gi >= 1: out.append(add(15, gi - 1))
                if gi % 2 == 0 and gi >= 2: out.append(cvt(15, gi - 2))
                for x in out: e(x)
        e(add(15, 15)); e(cvt(15, 14))
        g.stamp()
        for x in ea: e(x)
        e(f"v_mov_b32 v{t0}, v{vL}")
        e("s_waitcnt lgkmcnt(6)")
        e(pv(15, 0))
        lr = lred()
        for x in lr[:4]: e(x)
        e(pv(15, 4))
        e(lr[4])
        e("s_waitcnt lgkmcnt(0)")
        e(pv(15, 1))
        e("s_nop 3")
        e(pv(15, 5))
        e("s_nop 3")
        if opt.fineepi: g.stamp()
        q_ = muls(0) + pack(0, vK)
        ms = [pv(15, 2), pv(15, 6), pv(15, 3), pv(15, 7)]
        step = len(q_) // 5
        for k_, x in enumerate(q_):
            e(x)
            if k_ % step == step - 1 and ms: e(ms.pop(0))
        assert not ms
        if opt.prio or opt.prioslot: e("s_setprio 0")
        e("s_cmp_lg_u64 vcc, 0")
        e(f"s_cselect_b32 s{sFLAG}, 1, 0")
        if opt.fineepi: g.stamp()
        for x in muls(1) + pack(1, vK + 8): e(x)
        m2 = muls(2); h2 = len(m2) // 2
        for x in m2[:h2]: e(x)
        if opt.fineepi: g.stamp()
        e("s_waitcnt lgkmcnt(0)")
        if opt.fineepi: g.stamp(); e("s_waitcnt lgkmcnt(0)")
        for x in rd(0, vS[0]): e(x)
        for x in m2[h2:] + pack(2, vK + 16)[:6]: e(x)
        e("s_waitcnt lgkmcnt(2)")
        if opt.fineepi: g.stamp()
        p2 = pack(2, vK + 16)[6:]; m3 = muls(3)
        e(stv(0, 0, vS[0]))
        for x in p2[:3]: e(x)
        e(stv(0, 1, vS[0]))
        for x in p2[3:]: e(x)
        e(stv(0, 2, vS[0]))
        for x in m3[:h2]: e(x)
        e(stv(0, 3, vS[0]))
        if opt.fineepi: g.stamp()
        for x in m3[h2:] + pack(3, vK): e(x)
        if opt.fineepi: g.stamp()
        e("s_waitcnt lgkmcnt(0)")
        if opt.fineepi: g.stamp(); e("s_waitcnt lgkmcnt(0)")
        for x in rd(1, vS[1]): e(x)
        if opt.fineepi: e("s_waitcnt lgkmcnt(0)"); g.stamp()
        for i in range(4):
            e(f"s_waitcnt lgkmcnt({3-i})"); e(stv(1, i, vS[1]))
    else:
        dfr = [(n, f) for n in (12, 13, 14, 15) for f in (2, 3, 6, 7)]
        dst = {}
        for k_, nf in enumerate(dfr):
            dst[nf] = (vK + 4 * k_) if k_ < 8 else (vS[0] + 4 * (k_ - 8) if k_ < 12 else vNM + 4 * (k_ - 12))
        ea = epi_addrs()
        drd = [vread(n, f, h, dst[(n, f)]) for (n, f) in dfr for h in range(2)]
        k14 = keepf(14)
        for gi in range(16):
            if gi % 4 == 0:
                f = k14[gi // 4]
                if gi == 0: e("s_waitcnt lgkmcnt(0)")
                e(pv(14, f)); e(vread(15, f, 0)); e(vread(15, f, 1))
            else:
                for _ in range(3):
                    if drd: e(drd.pop(0))
            for x in valu(15, gi): e(x)
            if ea: e(ea.pop(0))
        assert not drd
        e(add(15, 15)); e(cvt(15, 14))
        g.stamp()
        for x in ea: e(x)
        e(f"v_mov_b32 v{t0}, v{vL}")
        e("s_waitcnt lgkmcnt(0)")
        e(pv(15, 0))
        lr = lred()
        for x in lr[:4]: e(x)
        e(pv(15, 4))
        e(lr[4])
        e(pv(15, 1)); e(pv(15, 5))
        dm = [pv(n, f, dst[(n, f)]) for (n, f) in dfr if (f & 3) == 2] + [pv(n, f, dst[(n, f)]) for (n, f) in dfr if (f & 3) == 3]
        e(dm.pop(0)); e("s_nop 7")
        Ra, Rb = vV, vV + 16
        fill = muls(0) + pack(0, Ra) + muls(1) + pack(1, Rb) + ["s_waitcnt lgkmcnt(0)"] + rd(0, vS[1])
        fill += [f"s_waitcnt lgkmcnt(3)", stv(0, 0, vS[1]), "s_waitcnt lgkmcnt(2)", stv(0, 1, vS[1]), "s_waitcnt lgkmcnt(1)", stv(0, 2, vS[1]), "s_waitcnt lgkmcnt(0)", stv(0, 3, vS[1])]
        per = opt.dfill
        while dm:
            for _ in range(per):
                if fill: e(fill.pop(0))
            e(dm.pop(0))
            if len(dm) == 4 and not any("v_mul" in x or "pk_mul" in x for x in fill):
                fill = fill + muls(2) + pack(2, Ra)
                m2done = True
        if opt.prio: e("s_setprio 0")
        e("s_cmp_lg_u64 vcc, 0")
        e(f"s_cselect_b32 s{sFLAG}, 1, 0")
        if not any(f"v{vO+32}" in x or f"v[{vO+32}:" in x for x in g.L[-200:] if "mul" in x) and not any(f"v{vO+32}," in x or f"v[{vO+32}:" in x for x in fill):
            fill = fill + muls(2) + pack(2, Ra)
        for x in fill: e(x)
        if len(fill) < 10: e("s_nop 7"); e("s_nop 3")
        for x in muls(3) + pack(3, Rb): e(x)
        e("s_waitcnt lgkmcnt(0)")
        for x in rd(1, vK): e(x)
        for i in range(4):
            e(f"s_waitcnt lgkmcnt({3-i})"); e(stv(1, i, vK))
    g.stamp()
    if not opt.notail:
        e(f"s_cmp_lg_u32 s{sISB}, 0"); e("s_cbranch_scc1 L_fb")
        for j in range(NS): e("s_barrier")
        g.lab("L_fb")
    e(f"s_lshl_b32 s{sT2}, s{sWID}, 2")
    e(f"v_mov_b32 v{t0}, s{sT2}")
    e(f"v_mov_b32 v{t1}, s{sFLAG}")
    e(f"ds_write_b32 v{t0}, v{t1} offset:{FLAG_OFF}")
    e("s_waitcnt lgkmcnt(0)")
    e("s_barrier")
    e(f"v_and_b32 v{t0}, 7, v{vLANE}")
    e(f"v_lshlrev_b32 v{t0}, 2, v{t0}")
    e(f"ds_read_b32 v{t1}, v{t0} offset:{FLAG_OFF}")
    e("s_waitcnt lgkmcnt(0)")
    e(f"v_cmp_ne_u32 vcc, 0, v{t1}")
    e(f"s_cmp_lg_u32 s{sREDO}, 0")
    e("s_cbranch_scc1 L_fin")
    e("s_cbranch_vccnz L_redo")
    g.lab("L_fin")
    if opt.probe is not None:
        e("s_waitcnt vmcnt(0)")
        g.stamp()
        e("s_waitcnt lgkmcnt(0)")
        e("s_sub_u32 s64, s62, s60")
        if opt.probegrp:
            e(f"s_cmp_eq_u32 s{sISB}, {0 if opt.probegrp == 'A' else 1}")
            e("s_cselect_b32 s64, s64, 0")
        e("s_add_u32 s64, s64, 6000")
        g.lab("L_dly")
        e("s_sleep 2")
        e("s_memrealtime s[66:67]"); e("s_waitcnt lgkmcnt(0)"); e("s_sub_u32 s65, s66, s60"); e("s_cmp_lt_u32 s65, s64"); e("s_cbranch_scc1 L_dly")
    if opt.stamps:
        e("s_waitcnt vmcnt(0)")
        g.stamp()
        e("s_memrealtime s[48:49]")
        e("s_waitcnt lgkmcnt(0)")
        e(f"s_lshl_b32 s36, s2, 3"); e(f"s_add_u32 s36, s36, s{sWID}"); e("s_lshl_b32 s36, s36, 7")
        e("v_mov_b32 v4, s36")
        e(f"v_cmp_eq_u32 vcc, 0, v{vLANE}"); e("s_and_saveexec_b64 s[42:43], vcc")
        e("v_mov_b32 v6, s46"); e("global_store_dword v4, v6, s[44:45] offset:0")
        e("v_mov_b32 v6, s48"); e("global_store_dword v4, v6, s[44:45] offset:4")
        for i in range(1, g.nstamp):
            e(f"s_sub_u32 s36, s{50+2*i}, s50"); e("v_mov_b32 v6, s36"); e(f"global_store_dword v4, v6, s[44:45] offset:{4+4*i}")
        e("s_waitcnt vmcnt(0)")
    g.lab("L_end")
    e("s_endpgm")
    g.lab("L_redo")
    e("s_barrier")
    e(f"s_mov_b32 s{sREDO}, 1")
    e(f"v_and_b32 v{t0}, 31, v{vLANE}"); e(f"v_lshrrev_b32 v{t1}, 5, v{vLANE}")
    e(f"v_lshlrev_b32 v{t0}, 8, v{t0}"); e(f"v_lshl_add_u32 v{t0}, v{t1}, 4, v{t0}")
    e(f"v_mov_b32 v{vM}, 0xff800000")
    e(f"s_mov_b32 s{sT2}, s{sKVOFF}")
    e(f"s_add_u32 s37, s{sKVOFF}, 131072")
    g.lab("L_redo_loop")
    e("s_waitcnt vmcnt(0)")
    for s in range(8):
        e(f"buffer_load_dwordx4 v[{vK+4*s}:{vK+4*s+3}], v{t0}, s[{sKSRD}:{sKSRD+3}], s{sT2} offen offset:{32*s}")
    e("s_waitcnt vmcnt(0)")
    for s in range(8): e(qk(0, s))
    e("s_nop 15"); e("s_nop 7")
    for i in range(0, 16, 2): e(f"v_max3_f32 v{vM}, v{vM}, v{S0+i}, v{S0+i+1}")
    e(f"s_add_u32 s{sT2}, s{sT2}, 8192")
    e(f"s_cmp_lt_u32 s{sT2}, s37")
    e("s_cbranch_scc1 L_redo_loop")
    e(f"v_mov_b32 v{t0}, v{vM}")
    e("s_nop 1")
    e(f"v_permlane32_swap_b32 v{vM}, v{t0}")
    e(f"v_max_f32 v{vM}, v{vM}, v{t0}")
    e("s_branch L_restart")
    g.L.append('.section .rodata,"a"'); g.L.append(".p2align 6"); g.L.append(f".amdhsa_kernel {KNAME}")
    for l in [f".amdhsa_next_free_vgpr {NV}", ".amdhsa_next_free_sgpr 102", f".amdhsa_accum_offset {NV}", ".amdhsa_group_segment_fixed_size 0",
              ".amdhsa_kernarg_size 48", ".amdhsa_user_sgpr_count 2", ".amdhsa_user_sgpr_kernarg_segment_ptr 1", ".amdhsa_system_sgpr_workgroup_id_x 1"]:
        g.L.append("  " + l)
    g.L.append(".end_amdhsa_kernel")
    g.L.append(f"; nstamp={g.nstamp}")
    return "\n".join(g.L) + "\n"

if __name__ == "__main__":
    ap = argparse.ArgumentParser()
    ap.add_argument("-o", default="standalone__gqa_softmax__near_ridge.s")
    ap.add_argument("--skew", type=int, default=2)
    ap.add_argument("--schedB", default="-1:K1,V0_0:K2,V1_1:Qa,Qb_2:K3,V2")
    ap.add_argument("--schedA", default="2:K4_3:V3,K5,V4_4:K6,V5_5:K7,V6_6:V7")
    ap.add_argument("--prescale", action="store_true")
    ap.add_argument("--defer", action="store_true")
    ap.add_argument("--dfill", type=int, default=5)
    ap.add_argument("--fineepi", action="store_true")
    ap.add_argument("--notail", action="store_true")
    ap.add_argument("--prioslot", type=int, default=0)
    ap.add_argument("--pkmul", action="store_true")
    ap.add_argument("--spread", type=int, default=1)
    ap.add_argument("--bgap", type=int, default=2)
    ap.add_argument("--prio", type=int, default=0)
    ap.add_argument("--stamps", action="store_true")
    ap.add_argument("--rt", action="store_true")
    ap.add_argument("--probe", type=int, default=None)
    ap.add_argument("--probegrp", default="")
    ap.add_argument("--ldflag", default="")
    ap.add_argument("--qflag", default="")
    ap.add_argument("--stflag", default="sc0 sc1 nt")
    opt = ap.parse_args()
    open(opt.o, "w").write(build(opt))
```

```python
import sys, math, argparse, struct

KNAME = "standalone__gqa_softmax__near_ridge_kernel"
C_SCALE = (128 ** -0.5) * math.log2(math.e)
def f32bits(x): return struct.unpack("<I", struct.pack("<f", x))[0]

class Gen:
    def __init__(self, opt):
        self.o = opt; self.L = []; self.vm = []; self.nstamp = 0; self.nlab = 0
    def e(self, s): self.L.append("    " + s)
    def lab(self, s): self.L.append(s + ":")
    def newlab(self, p="L"):
        self.nlab += 1; return f"{p}_{self.nlab}"
    def vm_issue(self, tag): self.vm.append(tag)
    def vm_wait(self, tags):
        idx = [i for i, t in enumerate(self.vm) if t in tags]
        if not idx: return
        self.e(f"s_waitcnt vmcnt({min(63, len(self.vm) - 1 - max(idx))})")
    def stamp(self, force=False):
        if self.o.lite and self.nstamp >= 1 and not force: return
        if self.o.probe is not None:
            i = self.nstamp; self.nstamp += 1
            if i == 0: self.e("s_memrealtime s[60:61]")
            if i == self.o.probe: self.e("s_memrealtime s[62:63]")
            return
        if not self.o.stamps: return
        if self.o.both:
            self.ncall = getattr(self, "ncall", -1) + 1
            if self.ncall in (1, 2, 10): return
            i = self.nstamp; self.nstamp += 1
            assert i < 13
            self.e(f"s_memrealtime s[{50+4*i}:{51+4*i}]"); self.e(f"s_memtime s[{52+4*i}:{53+4*i}]")
            return
        i = self.nstamp; self.nstamp += 1
        assert i < 24
        self.e(f"{'s_memrealtime' if self.o.rt else 's_memtime'} s[{50+2*i}:{51+2*i}]")

def parse_sched(txt):
    d = {}
    for tok in txt.replace("_", " ").split():
        j, lst = tok.split(":")
        d[int(j)] = [x for x in lst.split(",") if x]
    return d

def build(opt):
    g = Gen(opt); e = g.e
    R = 5; NS = opt.skew; PRE = opt.prescale; DEF = opt.defer
    KBASE = 0; VBASE = R * 16384
    lds_bytes = 163840
    FLAG_OFF = 4 * 16384
    ldflag = opt.ldflag; qflag = opt.qflag; stflag = opt.stflag
    needK = lambda p: p
    needV = lambda p: min(p + 1, 7) if opt.no8 else p + 1
    LASTG = 7 if opt.no8 else 8
    schedB = parse_sched(opt.schedB)
    schedA = parse_sched(opt.schedA)
    when = {}
    for d in (schedB, schedA):
        for j, l in d.items():
            for x in l:
                assert x not in when; when[x] = j
    qdirect = "QD" in when
    qregs = "QR" in when
    for p in range(8):
        if p > 0:
            w_ = when[f"K{p}"]
            assert w_ < needK(p) and (p < 5 or w_ >= p - 4 + NS) and (p not in (3, 4) or w_ >= 1), f"K{p}"
        w_ = when[f"V{p}"]
        assert w_ < needV(p) and (p < 5 or w_ >= p - 3 + NS) and (qdirect or p not in ((4,) if qregs else (3, 4)) or w_ >= NS + 1), f"V{p}"
    assert all(j <= NS + 1 for j in schedB) and all(j >= 2 for j in schedA)
    for j, l in schedB.items():
        pass
    sKSRD, sVSRD, sQSRD, sOSRD = 8, 12, 16, 20
    sW4K = 24; sKVOFF = 25; sQOFF = 26; sC = 27; sREDO = 28; sTMP = 29; sWID = 30; sT2 = 31; sSTG = 39; sISB = 40; sFLAG = 41; sOST = 37
    vLANE = 0; t0, t1, t2 = 1, 2, 3
    vQ = 4; vO = 36; vS = [100, 116]; vK = 148; vV = 180
    vL = 232; vM = 233; vKA = 234; vVA = 242; vDK = 246; vDV = 250
    if PRE:
        vP = [132, 140]; vNM = 212; vT = [228, 229, 230, 231]
    else:
        vP = [132, 132]; vT = list(range(212, 228)); vX = [228, 229]; vMC = 230
    NT = len(vT)
    vOW = 251; vOR = 252; vOS = 253
    NV = 256

    g.L.append(f"; GQA attention fwd: B8 Hq32 Hkv8 Sq256 Sk512 D128 bf16. generated by gen8.py {' '.join(sys.argv[1:])}")
    g.L.append(f"; @launch grid=(256,1,1) block=(512,1,1) lds={lds_bytes}")
    g.L.append('.amdgcn_target "amdgcn-amd-amdhsa--gfx950"')
    g.L.append(".text"); g.L.append(f".globl {KNAME}"); g.L.append(".p2align 8"); g.L.append(f".type {KNAME},@function")
    g.lab(KNAME)
    e("s_load_dwordx4 s[4:7], s[0:1], 0")
    e("s_load_dwordx4 s[32:35], s[0:1], 16")
    g.stamp()
    if opt.stamps: e("s_memrealtime s[46:47]"); e("s_load_dwordx2 s[44:45], s[0:1], 40")
    e("s_cmp_ge_u32 s2, 256")
    e("s_cbranch_scc1 L_end")
    e(f"v_lshrrev_b32 v{t0}, 6, v0")
    e(f"v_and_b32 v{vLANE}, 63, v0")
    e(f"v_readfirstlane_b32 s{sWID}, v{t0}")
    e("s_and_b32 s36, s2, 7")
    e("s_lshr_b32 s37, s2, 3")
    e("s_lshl_b32 s38, s36, 5")
    e("s_add_u32 s38, s38, s37")
    e(f"s_lshl_b32 s{sQOFF}, s38, 16")
    e("s_lshl_b32 s38, s36, 3")
    e("s_lshr_b32 s37, s37, 2")
    e("s_add_u32 s38, s38, s37")
    e(f"s_lshl_b32 s{sKVOFF}, s38, 17")
    e(f"s_mov_b32 s{sREDO}, 0")
    e(f"s_mov_b32 s{sC}, 0x{f32bits(C_SCALE):08x}")
    e(f"s_lshl_b32 s36, s{sWID}, 13")
    e(f"s_add_u32 s{sQOFF}, s{sQOFF}, s36")
    e(f"s_and_b32 s36, s{sWID}, 3")
    e(f"s_lshl_b32 s{sW4K}, s36, 12")
    e(f"s_lshr_b32 s{sISB}, s{sWID}, 2")
    e(f"s_lshl_b32 s{sSTG}, s36, 13")
    e(f"s_mul_i32 s{sTMP}, s{sISB}, {VBASE}")
    e(f"s_add_u32 s{sSTG}, s{sSTG}, s{sTMP}")
    e(f"s_add_u32 s{sSTG}, s{sSTG}, {3*16384}")
    def srd(d, p, n):
        e(f"s_mov_b32 s{d}, s{p}"); e(f"s_and_b32 s{d+1}, s{p+1}, 0xffff"); e(f"s_mov_b32 s{d+2}, {n}"); e(f"s_mov_b32 s{d+3}, 0x20000")
    first = [True]
    g.lab("L_restart")
    e(f"v_lshrrev_b32 v{t0}, 4, v{vLANE}")
    e(f"v_and_b32 v{t1}, 15, v{vLANE}")
    e(f"v_xor_b32 v{t2}, v{t0}, v{t1}")
    e(f"v_lshlrev_b32 v{vDV}, 8, v{t0}")
    e(f"v_lshl_add_u32 v{vDK}, v{t2}, 4, v{vDV}")
    for p in range(1, 4): e(f"v_xor_b32 v{vDK+p}, {64*p}, v{vDK}")
    e(f"v_lshlrev_b32 v{t2}, 2, v{t0}")
    e(f"v_xor_b32 v{t2}, v{t2}, v{t1}")
    e(f"v_lshl_add_u32 v{vDV}, v{t2}, 4, v{vDV}")
    e(f"s_add_u32 s38, s{sKVOFF}, s{sW4K}")
    e("s_waitcnt lgkmcnt(0)")
    if opt.fine: g.stamp()
    srd(sKSRD, 6, 8388608)
    def dma_items(x):
        out = []
        if x == "QD":
            out += [f"v_and_b32 v{t0}, 31, v{vLANE}", f"v_lshrrev_b32 v{t1}, 5, v{vLANE}", f"v_lshlrev_b32 v{t0}, 8, v{t0}", f"v_lshl_add_u32 v{t0}, v{t1}, 4, v{t0}"]
            for s in range(8):
                out.append((f"buffer_load_dwordx4 v[{vQ+4*s}:{vQ+4*s+3}], v{t0}, s[{sQSRD}:{sQSRD+3}], s{sQOFF} offen offset:{32*s} {qflag}", x))
            return out
        if x[0] == "T":
            out.append(f"v_lshlrev_b32 v{t0}, 7, v{vLANE}")
            out.append((f"buffer_load_dword v{t1}, v{t0}, s[{sQSRD}:{sQSRD+3}], s{sQOFF} offen offset:{64 if x == 'TQ2' else 0}", x))
            return out
        if x[0] in "PH":
            kind, t = x[1], int(x[2:])
            srdn = sKSRD if kind == "K" else sVSRD
            out += ["s_bfe_u32 s36, s2, 0x20003", "s_lshl_b32 s36, s36, 12", f"s_add_u32 s36, s36, s{sKVOFF}"]
            if x[0] == "P":
                out += [f"s_lshl_b32 s{sTMP}, s{sW4K}, 2", f"s_add_u32 s36, s36, s{sTMP}", f"s_add_u32 s36, s36, {t*16384}", f"v_lshlrev_b32 v{t0}, 6, v{vLANE}"]
            else:
                out += [f"s_lshr_b32 s{sTMP}, s{sW4K}, 2", f"s_add_u32 s36, s36, s{sTMP}", f"s_add_u32 s36, s36, {t*16384}",
                        f"v_and_b32 v{t0}, 7, v{vLANE}", f"v_lshlrev_b32 v{t0}, 7, v{t0}", f"v_lshrrev_b32 v{t2}, 3, v{vLANE}", f"v_lshl_add_u32 v{t0}, v{t2}, 14, v{t0}"]
                n_ = opt.hcount
                out += [f"s_mov_b32 exec_lo, {hex((1 << min(32, 8*n_)) - 1)}", f"s_mov_b32 exec_hi, {hex((1 << max(0, 8*n_-32)) - 1)}"]
            out.append((f"buffer_load_dword v{t1}, v{t0}, s[{srdn}:{srdn+3}], s36 offen", x))
            if x[0] == "H": out.append("s_mov_b64 exec, -1")
            return out
        if x == "QR":
            out.append(f"s_add_u32 s{sTMP}, s{sQOFF}, 4096")
            for i in range(8):
                out.append((f"buffer_load_dwordx4 v[{vO+4*i}:{vO+4*i+3}], v{vDK+(i&3)}, s[{sQSRD}:{sQSRD+3}], s{sQOFF if i < 4 else sTMP} offen offset:{1024*(i&3)} {qflag}", x))
            return out
        if x[0] == "Q":
            half = 0 if x == "Qa" else 1
            out += [f"s_add_u32 m0, s{sSTG}, {4096*half}", f"s_add_u32 s{sTMP}, s{sQOFF}, {4096*half}"]
            for i in range(4):
                out.append((f"buffer_load_dwordx4 v{vDK+i}, s[{sQSRD}:{sQSRD+3}], s{sTMP} offen offset:{1024*i} {qflag} lds", x))
            return out
        kind, p = x[0], int(x[1:])
        base = (KBASE if kind == "K" else VBASE) + (p % R) * 16384
        srdn = sKSRD if kind == "K" else sVSRD
        out += [f"s_add_u32 m0, s{sW4K}, {base}", f"s_add_u32 s{sTMP}, s38, {p*16384}"]
        for i in range(4):
            va = vDK + i if kind == "K" else vDV
            out.append((f"buffer_load_dwordx4 v{va}, s[{srdn}:{srdn+3}], s{sTMP} offen offset:{1024*i} {ldflag} lds", x))
        return out
    def emit_items(lst):
        for y in lst:
            if isinstance(y, tuple): e(y[0]); g.vm_issue(y[1])
            else: e(y)
    def dma(x): emit_items(dma_items(x))
    def guarded(lst):
        l = g.newlab("L_nd")
        e(f"s_cmp_lg_u32 s{sISB}, 0"); e(f"s_cbranch_scc1 {l}")
        emit_items(lst)
        g.lab(l)
    def addrs():
        e(f"v_and_b32 v{t0}, 31, v{vLANE}")
        e(f"v_lshrrev_b32 v{t2}, 5, v{vLANE}")
        e(f"v_and_b32 v{t1}, 15, v{t0}")
        e(f"v_xor_b32 v{t1}, v{t1}, v{t2}")
        e(f"v_lshlrev_b32 v{t1}, 4, v{t1}")
        e(f"v_lshl_add_u32 v{vKA}, v{t0}, 8, v{t1}")
        for s in range(1, 8): e(f"v_xor_b32 v{vKA+s}, {32*s}, v{vKA}")
        e(f"v_bfe_u32 v{t0}, v{vLANE}, 2, 2")
        e(f"v_lshl_add_u32 v{t1}, v{t2}, 2, v{t0}")
        e(f"v_lshlrev_b32 v{t1}, 8, v{t1}")
        e(f"v_lshl_add_u32 v{t1}, v{t0}, 6, v{t1}")
        e(f"v_bfe_u32 v{t0}, v{vLANE}, 4, 1")
        e(f"v_lshl_add_u32 v{t1}, v{t0}, 5, v{t1}")
        e(f"v_and_b32 v{t0}, 3, v{vLANE}")
        e(f"v_lshl_add_u32 v{t1}, v{t0}, 3, v{t1}")
        e(f"v_add_u32 v{vVA}, {VBASE}, v{t1}")
        if opt.altpar:
            e(f"s_lshl_b32 s36, s{sWID}, 7"); e("s_and_b32 s36, s36, 128")
            e(f"v_xor_b32 v{vVA}, s36, v{vVA}")
        for db in range(1, 4): e(f"v_xor_b32 v{vVA+db}, {64*db}, v{vVA}")
        e(f"v_mov_b32 v{vL}, 0")
        for s in range(8): e(f"v_add_u32 v{vV+s}, s{sSTG}, v{vKA+s}")
        for x in [f"s_sub_u32 s{sOST}, s{sSTG}, s{sW4K}", f"v_and_b32 v{t0}, 31, v{vLANE}", f"v_lshlrev_b32 v{t1}, 7, v{t0}",
             f"v_lshl_add_u32 v{t1}, v{t2}, 3, v{t1}", f"v_and_b32 v{t0}, 7, v{t0}", f"v_lshl_add_u32 v{t1}, v{t0}, 4, v{t1}",
             f"v_add_u32 v{vOW}, s{sOST}, v{t1}", f"v_lshlrev_b32 v{vOR}, 4, v{vLANE}", f"v_add_u32 v{vOR}, s{sOST}, v{vOR}",
             f"v_lshrrev_b32 v{t0}, 3, v{vLANE}", f"v_and_b32 v{t1}, 7, v{vLANE}", f"v_xor_b32 v{t1}, v{t1}, v{t0}",
             f"v_lshlrev_b32 v{t0}, 8, v{t0}", f"v_lshl_add_u32 v{vOS}, v{t1}, 4, v{t0}"]: e(x)
        if opt.altpar: e(f"v_xor_b32 v{vOS}, s36, v{vOS}")
        e(f"v_xor_b32 v{vOS+1}, 128, v{vOS}")
    def qread():
        for s in range(8): e(f"ds_read_b128 v[{vQ+4*s}:{vQ+4*s+3}], v{vV+s}")
    needed_at = lambda j: {f"K{p}" for p in range(8) if needK(p) == j} | {f"V{p}" for p in range(8) if needV(p) == j}

    e(f"s_cmp_lg_u32 s{sISB}, 0")
    e("s_cbranch_scc1 L_proB")
    g.vm = []
    dma("K0"); srd(sQSRD, 4, 16777216); dma("Qa"); dma("Qb")
    if opt.fine: g.stamp()
    srd(sVSRD, 32, 8388608); srd(sOSRD, 34, 16777216)
    addrs()
    if opt.prio: e(f"s_setprio {opt.prio}")
    g.vm_wait({"K0"})
    vmA = g.vm
    e("s_branch L_main")
    g.lab("L_proB")
    g.vm = []
    srd(sQSRD, 4, 16777216); srd(sVSRD, 32, 8388608); srd(sOSRD, 34, 16777216)
    addrs()
    for x in schedB.get(-1, []): dma(x)
    for j in range(NS):
        g.vm_wait(needed_at(j))
        e("s_barrier")
        for x in schedB.get(j, []): dma(x)
    g.vm_wait(needed_at(NS))
    vmB = g.vm
    g.lab("L_main")
    g.vm = vmA
    st = {"K": 0, "V": 0}
    def rebias(kind, t):
        want = 65536 if (t % R) == 4 else 0
        if st[kind] != want:
            regs = [vKA + s for s in range(8)] if kind == "K" else [vVA + d for d in range(4)]
            for r_ in regs: e(f"v_add_u32 v{r_}, {65536 if want else -65536 & 0xffffffff}, v{r_}")
            st[kind] = want
    def kread(n, s):
        t, blk = n >> 1, n & 1
        return f"ds_read_b128 v[{vK+4*s}:{vK+4*s+3}], v{vKA+s} offset:{KBASE + (t % R) * 16384 + blk * 8192 - st['K']}"
    def vread(n, f, h, dst=None):
        t, blk = n >> 1, n & 1
        j, db = (f >> 2, f & 3)
        d = (vV + 4 * f if dst is None else dst) + 2 * h
        return f"ds_read_b64_tr_b16 v[{d}:{d+1}], v{vVA+db} offset:{(t % R) * 16384 + (blk * 32 + 16 * j + 8 * h) * 256 - st['V']}"
    def qk(n, s):
        S = vS[n & 1]
        cin = f"v[{S}:{S+15}]" if s else (f"v[{vNM}:{vNM+15}]" if (PRE and n >= 2) else "0")
        return f"v_mfma_f32_32x32x16_bf16 v[{S}:{S+15}], v[{vK+4*s}:{vK+4*s+3}], v[{vQ+4*s}:{vQ+4*s+3}], {cin}"
    Pbuf = {n: vP[n & 1] for n in range(16)}
    if DEF:
        assert PRE
        Pbuf[14] = vV + 8; Pbuf[15] = vV + 24
    elif not PRE:
        Pbuf[15] = vK + 24
    def pv(n, f, src=None):
        j, db = (f >> 2, f & 3)
        O = vO + 16 * db; P = Pbuf[n] + 4 * j
        a = vV + 4 * f if src is None else src
        cin = "0" if (n == 0 and j == 0) else f"v[{O}:{O+15}]"
        return f"v_mfma_f32_32x32x16_bf16 v[{O}:{O+15}], v[{a}:{a+3}], v[{P}:{P+3}], {cin}"
    def pre(n, i):
        if not PRE: return f"v_fma_f32 v{vX[i&1]}, v{vS[n&1]+i}, s{sC}, -v{vMC}"
        if n < 2: return f"v_sub_f32 v{vS[n&1]+i}, v{vS[n&1]+i}, v{vM}"
        return None
    def exp(n, i): return f"v_exp_f32 v{vT[i%NT]}, v{vS[n&1]+i if PRE else vX[i&1]}"
    def add(n, i): return f"v_add_f32 v{vL}, v{vL}, v{vT[i%NT]}"
    def cvt(n, i): return f"v_cvt_pk_bf16_f32 v{Pbuf[n]+(i>>1)}, v{vT[i%NT]}, v{vT[(i+1)%NT]}"
    def scaleq(s):
        out = []
        for r_ in range(vQ + 4 * s, vQ + 4 * s + 4):
            out += [f"v_lshlrev_b32 v{t0}, 16, v{r_}", f"v_and_b32 v{t1}, 0xffff0000, v{r_}",
                    f"v_mul_f32 v{t0}, s{sC}, v{t0}", f"v_mul_f32 v{t1}, s{sC}, v{t1}", f"v_cvt_pk_bf16_f32 v{r_}, v{t0}, v{t1}"]
        return out

    def both_wait(t):
        n = 63
        for vm, j in ((vmA, t), (vmB, t + NS)):
            idx = [i for i, x in enumerate(vm) if x in needed_at(j)]
            if idx: n = min(n, len(vm) - 1 - max(idx))
        if n < 63: e(f"s_waitcnt vmcnt({n})")
    g.stamp()
    e("s_barrier")
    g.stamp()
    for s in range(8): e(kread(0, s))
    e(f"s_cmp_lg_u32 s{sISB}, 0"); e("s_cbranch_scc1 L_bq")
    g.vm_wait({"Qb"})
    if qdirect or qregs: qread()
    e("s_branch L_haveq")
    g.lab("L_bq")
    g.vm = vmB
    for x in schedB.get(NS, []): dma(x)
    if qregs:
        e(f"s_add_u32 s{sT2}, s{sW4K}, {VBASE + 4*16384}")
        e(f"v_lshl_add_u32 v{t0}, v{vLANE}, 4, s{sT2}")
        for s_ in range(8): e(f"v_add_u32 v{vV+s_}, s{sT2}, v{vKA+s_}")
        for s_ in range(8): e(f"v_add_u32 v{vV+8+s_}, -4096, v{vV+s_}")
        g.vm_wait({"QR"})
        for h in range(2):
            for i in range(4): e(f"ds_write_b128 v{t0}, v[{vO+16*h+4*i}:{vO+16*h+4*i+3}] offset:{1024*i}")
            e("s_waitcnt lgkmcnt(0)")
            m_ = "0x0000ffff" if h == 0 else "0xffff0000"
            e(f"s_mov_b32 exec_lo, {m_}"); e(f"s_mov_b32 exec_hi, {m_}")
            for s_ in range(8): e(f"ds_read_b128 v[{vQ+4*s_}:{vQ+4*s_+3}], v{vV+8*h+s_}")
            e("s_mov_b64 exec, -1")
            if h == 0: e("s_waitcnt lgkmcnt(0)")
    else:
        g.vm_wait({"Qa", "Qb", "QD"})
    g.vm = vmA
    g.lab("L_haveq")
    if not (qdirect or qregs): qread()
    e("s_waitcnt lgkmcnt(0)")
    g.stamp()
    S0 = vS[0]
    if PRE:
        for x in scaleq(0): e(x)
        for s in range(8):
            nxt = scaleq(s + 1) if s < 7 else ["s_nop 0"]
            e(nxt[0]); e(nxt[1] if len(nxt) > 1 else "s_nop 0")
            e(qk(0, s)); e(kread(1, s))
            for x in nxt[2:]: e(x)
    else:
        for s in range(8):
            e(qk(0, s)); e(kread(1, s))
    e("s_waitcnt lgkmcnt(4)")
    e(qk(1, 0)); e(qk(1, 1))
    e("s_nop 7")
    e(f"s_cmp_lg_u32 s{sREDO}, 0")
    e("s_cbranch_scc1 L_have_m")
    u = vV + 8
    e(f"v_max3_f32 v{vM}, v{S0}, v{S0+1}, v{S0+2}")
    e(f"v_max3_f32 v{u}, v{S0+3}, v{S0+4}, v{S0+5}")
    e(f"v_max3_f32 v{u+1}, v{S0+6}, v{S0+7}, v{S0+8}")
    e(f"v_max3_f32 v{u+2}, v{S0+9}, v{S0+10}, v{S0+11}")
    e(f"v_max3_f32 v{u+3}, v{S0+12}, v{S0+13}, v{S0+14}")
    e(f"v_max3_f32 v{vM}, v{vM}, v{u}, v{S0+15}")
    e(f"v_max3_f32 v{u+1}, v{u+1}, v{u+2}, v{u+3}")
    e(f"v_max_f32 v{vM}, v{vM}, v{u+1}")
    e(f"v_mov_b32 v{u}, v{vM}")
    e("s_nop 1")
    e(f"v_permlane32_swap_b32 v{vM}, v{u}")
    e(f"v_max_f32 v{vM}, v{vM}, v{u}")
    g.lab("L_have_m")
    e(qk(1, 2))
    if not PRE: e(f"v_mul_f32 v{vMC}, s{sC}, v{vM}")
    e(pre(0, 0))
    def valu(n, gi):
        out = [exp(n, gi)]
        out.append(pre(n, gi + 1) if gi < 15 else (pre(n + 1, 0) if n < 15 else None))
        if gi >= 1: out.append(add(n, gi - 1))
        elif n >= 1: out.append(add(n - 1, 15))
        if PRE:
            if gi % 2 == 0:
                if gi >= 2: out.append(cvt(n, gi - 2))
                elif n >= 1: out.append(cvt(n - 1, 14))
        elif n >= 1 and gi < 8:
            out.insert(0, cvt(n - 1, 0)) if gi == 0 else out.append(cvt(n - 1, 2 * gi))
        return [x for x in out if x]
    mf = [qk(1, s) for s in range(3, 8)]
    for gi in range(10):
        if gi % 2 == 0:
            if gi == 2: e("s_waitcnt lgkmcnt(0)")
            e(mf.pop(0))
        for x in valu(0, gi): e(x)
    both_wait(1)
    e("s_barrier")
    if schedB.get(NS + 1):
        e(f"s_cmp_eq_u32 s{sISB}, 0"); e("s_cbranch_scc1 L_noB1")
        g.vm = vmB
        for x in schedB[NS + 1]: dma(x)
        g.vm = vmA
        g.lab("L_noB1")
    rd0 = [kread(2, s) for s in range(8)] + [vread(0, f, h) for f in range(8) for h in range(2)]
    nm = [f"v_sub_f32 v{vNM+i}, 0, v{vM}" for i in range(16)] if PRE else []
    for gi in range(10, 16):
        for _ in range(4): e(rd0.pop(0))
        for _ in range(3):
            if nm: e(nm.pop(0))
        for x in valu(0, gi): e(x)
    g.stamp()
    BG = opt.bgap
    pend = []
    keepf = lambda n: [f for f in range(8) if not (DEF and n >= 12 and (f & 3) >= 2)]
    def epi_addrs():
        return [f"v_mov_b32 v{vKA}, v{vOW}"] + [f"v_xor_b32 v{vKA+i}, {16*i}, v{vOW}" for i in range(1, 8)] + [f"s_add_u32 s{sT2}, s{sQOFF}, 4096"]
    for n in range(1, 15):
        kq = list(range(8)) if n < 14 else []
        hasbar = (n % 2 == 0)
        pvs = keepf(n - 1); vrs = keepf(n)
        nm_ = 8 + len(pvs)
        done = 0
        for mi in range(nm_):
            if mi == 0:
                if n == opt.prioslot: e("s_setprio 1")
                e(f"s_waitcnt lgkmcnt({min(15, 2*len(pvs))})")
                if n < 14: rebias("K", (n + 2) >> 1)
            if mi == 8:
                if n < 14: e("s_waitcnt lgkmcnt(8)")
                elif opt.notail: e("s_waitcnt lgkmcnt(0)")
                rebias("V", n >> 1)
            if hasbar and mi == BG and n // 2 + 1 <= LASTG:
                t = n // 2 + 1
                if opt.notail and t >= LASTG + 1 - NS:
                    l_ = g.newlab("L_nb")
                    e(f"s_cmp_lg_u32 s{sISB}, 0"); e(f"s_cbranch_scc1 {l_}")
                    g.vm_wait(needed_at(t))
                    e("s_waitcnt lgkmcnt(0)")
                    e("s_barrier")
                    g.lab(l_)
                else:
                    both_wait(t)
                    e("s_waitcnt lgkmcnt(0)")
                    e("s_barrier")
                for x in schedA.get(t, []):
                    it = dma_items(x)
                    pend.append(it[:3])
                    for y in it[3:]: pend.append([y])
            if mi < 8:
                e(qk(n + 1, mi))
                if not hasbar or mi >= BG:
                    cnt = 0
                    while kq and kq[0] <= mi and cnt < 2:
                        e(kread(n + 2, kq.pop(0))); cnt += 1
            else:
                assert not kq
                f = pvs[mi - 8]
                e(pv(n - 1, f))
                if f in vrs: e(vread(n, f, 0)); e(vread(n, f, 1))
            upto = ((mi + 1) * 16 + nm_ - 1) // nm_
            while done < upto:
                for x in valu(n, done): e(x)
                done += 1
            if pend and mi % opt.spread == opt.spread - 1: guarded(pend.pop(0))
        if n % 2 == 1:
            for blk in pend: guarded(blk)
            pend = []
        if n % 2 == 0 and not (opt.fineepi and n < 14): g.stamp()
    assert not pend
    def muls(db):
        if opt.pkmul: return [f"v_pk_mul_f32 v[{vO+16*db+i}:{vO+16*db+i+1}], v[{vO+16*db+i}:{vO+16*db+i+1}], v[{t2-1}:{t2}] op_sel_hi:[1,0]" for i in range(0, 16, 2)]
        return [f"v_mul_f32 v{vO+16*db+i}, v{t1}, v{vO+16*db+i}" for i in range(16)]
    def pack(db, Rr):
        O = vO + 16 * db; out = []
        for gq in range(4):
            out.append(f"v_cvt_pk_bf16_f32 v{Rr+2*gq}, v{O+4*gq}, v{O+4*gq+1}")
            out.append(f"v_cvt_pk_bf16_f32 v{Rr+2*gq+1}, v{O+4*gq+2}, v{O+4*gq+3}")
            ch = 4 * db + gq
            out.append(f"ds_write_b64 v{vKA+(ch&7)}, v[{Rr+2*gq}:{Rr+2*gq+1}]")
        return out
    def rd(h, D): return [f"ds_read_b128 v[{D+4*i}:{D+4*i+3}], v{vOR} offset:{1024*i}" for i in range(4)]
    def stv(h, i, D): return f"buffer_store_dwordx4 v[{D+4*i}:{D+4*i+3}], v{vOS+h}, s[{sOSRD}:{sOSRD+3}], s{sQOFF if i < 2 else sT2} offen offset:{2048*(i&1)} {stflag if h == 0 or opt.stflag1 is None else opt.stflag1}"
    def lred():
        return [f"v_permlane32_swap_b32 v{vL}, v{t0}", f"s_mov_b32 s{sTMP}, 0x{f32bits(2.0**30):08x}", f"v_add_f32 v{vL}, v{vL}, v{t0}",
                f"v_rcp_f32 v{t1}, v{vL}", f"v_cmp_nge_f32 vcc, s{sTMP}, v{vL}"]
    if not DEF:
        ea = epi_addrs()
        if not PRE:
            for k_ in range(4): e(cvt(14, 2 * k_))
            late = [cvt(14, 8 + 2 * k_) for k_ in range(4)]
            e(add(14, 15))
        for gi in range(16):
            if gi % 2 == 0:
                f = gi // 2
                if f in (0, 4): e("s_waitcnt lgkmcnt(8)")
                e(pv(14, f)); e(vread(15, f, 0)); e(vread(15, f, 1))
            if PRE:
                for x in valu(15, gi): e(x)
                for _ in range(2):
                    if ea: e(ea.pop(0))
            else:
                if late: e(late.pop(0))
                out = [exp(15, gi)]
                if gi < 15: out.append(pre(15, gi + 1))
                if gi >= 1: out.append(add(15, gi - 1))
                if gi % 2 == 0 and gi >= 2: out.append(cvt(15, gi - 2))
                for x in out: e(x)
        e(add(15, 15)); e(cvt(15, 14))
        g.stamp()
        e(f"v_mov_b32 v{t0}, v{vL}")
        e("s_waitcnt lgkmcnt(6)")
        e(pv(15, 0))
        lr = lred()
        for x in lr[:4]: e(x)
        e(pv(15, 4))
        e(lr[4])
        ea += ["s_nop 0"] * (9 - len(ea))
        for x in ea[:4]: e(x)
        e("s_waitcnt lgkmcnt(0)")
        e(pv(15, 1))
        for x in ea[4:]: e(x)
        e(pv(15, 5))
        if opt.fineepi: g.stamp()
        q_ = muls(0) + pack(0, vK)
        ms = [pv(15, 2), pv(15, 6), pv(15, 3), pv(15, 7)]
        step = len(q_) // 5
        for k_, x in enumerate(q_):
            e(x)
            if k_ % step == step - 1 and ms: e(ms.pop(0))
        assert not ms
        if opt.prio or opt.prioslot: e("s_setprio 0")
        e("s_cmp_lg_u64 vcc, 0")
        e(f"s_cselect_b32 s{sFLAG}, 1, 0")
        if opt.fineepi: g.stamp()
        for x in muls(1) + pack(1, vK + 8): e(x)
        m2 = muls(2); h2 = len(m2) // 2
        for x in m2[:h2]: e(x)
        if opt.fineepi: g.stamp()
        e("s_waitcnt lgkmcnt(0)")
        if opt.fineepi: g.stamp(); e("s_waitcnt lgkmcnt(0)")
        for x in rd(0, vS[0]): e(x)
        for x in m2[h2:] + pack(2, vK + 16)[:6]: e(x)
        e("s_waitcnt lgkmcnt(2)")
        if opt.fineepi: g.stamp()
        p2 = pack(2, vK + 16)[6:]; m3 = muls(3)
        e(stv(0, 0, vS[0]))
        for x in p2[:3]: e(x)
        e(stv(0, 1, vS[0]))
        for x in p2[3:]: e(x)
        e(stv(0, 2, vS[0]))
        for x in m3[:h2]: e(x)
        e(stv(0, 3, vS[0]))
        if opt.fineepi: g.stamp()
        for x in m3[h2:] + pack(3, vK): e(x)
        if opt.fineepi: g.stamp()
        e("s_waitcnt lgkmcnt(0)")
        if opt.fineepi: g.stamp(); e("s_waitcnt lgkmcnt(0)")
        for x in rd(1, vS[1]): e(x)
        if opt.fineepi: e("s_waitcnt lgkmcnt(0)"); g.stamp()
        for i in range(4):
            e(f"s_waitcnt lgkmcnt({3-i})"); e(stv(1, i, vS[1]))
    else:
        dfr = [(n, f) for n in (12, 13, 14, 15) for f in (2, 3, 6, 7)]
        dst = {}
        for k_, nf in enumerate(dfr):
            dst[nf] = (vK + 4 * k_) if k_ < 8 else (vS[0] + 4 * (k_ - 8) if k_ < 12 else vNM + 4 * (k_ - 12))
        ea = epi_addrs()
        drd = [vread(n, f, h, dst[(n, f)]) for (n, f) in dfr for h in range(2)]
        k14 = keepf(14)
        for gi in range(16):
            if gi % 4 == 0:
                f = k14[gi // 4]
                if gi == 0: e("s_waitcnt lgkmcnt(0)")
                e(pv(14, f)); e(vread(15, f, 0)); e(vread(15, f, 1))
            else:
                for _ in range(3):
                    if drd: e(drd.pop(0))
            for x in valu(15, gi): e(x)
            if ea: e(ea.pop(0))
        assert not drd
        e(add(15, 15)); e(cvt(15, 14))
        g.stamp()
        for x in ea: e(x)
        e(f"v_mov_b32 v{t0}, v{vL}")
        e("s_waitcnt lgkmcnt(0)")
        e(pv(15, 0))
        lr = lred()
        for x in lr[:4]: e(x)
        e(pv(15, 4))
        e(lr[4])
        e(pv(15, 1)); e(pv(15, 5))
        dm = [pv(n, f, dst[(n, f)]) for (n, f) in dfr if (f & 3) == 2] + [pv(n, f, dst[(n, f)]) for (n, f) in dfr if (f & 3) == 3]
        e(dm.pop(0)); e("s_nop 7")
        Ra, Rb = vV, vV + 16
        fill = muls(0) + pack(0, Ra) + muls(1) + pack(1, Rb) + ["s_waitcnt lgkmcnt(0)"] + rd(0, vS[1])
        fill += [f"s_waitcnt lgkmcnt(3)", stv(0, 0, vS[1]), "s_waitcnt lgkmcnt(2)", stv(0, 1, vS[1]), "s_waitcnt lgkmcnt(1)", stv(0, 2, vS[1]), "s_waitcnt lgkmcnt(0)", stv(0, 3, vS[1])]
        per = opt.dfill
        while dm:
            for _ in range(per):
                if fill: e(fill.pop(0))
            e(dm.pop(0))
            if len(dm) == 4 and not any("v_mul" in x or "pk_mul" in x for x in fill):
                fill = fill + muls(2) + pack(2, Ra)
                m2done = True
        if opt.prio: e("s_setprio 0")
        e("s_cmp_lg_u64 vcc, 0")
        e(f"s_cselect_b32 s{sFLAG}, 1, 0")
        if not any(f"v{vO+32}" in x or f"v[{vO+32}:" in x for x in g.L[-200:] if "mul" in x) and not any(f"v{vO+32}," in x or f"v[{vO+32}:" in x for x in fill):
            fill = fill + muls(2) + pack(2, Ra)
        for x in fill: e(x)
        if len(fill) < 10: e("s_nop 7"); e("s_nop 3")
        for x in muls(3) + pack(3, Rb): e(x)
        e("s_waitcnt lgkmcnt(0)")
        for x in rd(1, vK): e(x)
        for i in range(4):
            e(f"s_waitcnt lgkmcnt({3-i})"); e(stv(1, i, vK))
    g.stamp()
    if not opt.notail:
        e(f"s_cmp_lg_u32 s{sISB}, 0"); e("s_cbranch_scc1 L_fb")
        for j in range(NS): e("s_barrier")
        g.lab("L_fb")
    e(f"s_lshl_b32 s{sT2}, s{sWID}, 2")
    e(f"s_add_u32 s{sT2}, s{sT2}, {FLAG_OFF}")
    e(f"v_mov_b32 v{t0}, s{sT2}")
    e(f"v_mov_b32 v{t1}, s{sFLAG}")
    e(f"ds_write_b32 v{t0}, v{t1}")
    e("s_waitcnt lgkmcnt(0)")
    e("s_barrier")
    e(f"v_and_b32 v{t0}, 7, v{vLANE}")
    e(f"v_lshlrev_b32 v{t0}, 2, v{t0}")
    e(f"v_add_u32 v{t0}, {FLAG_OFF}, v{t0}")
    e(f"ds_read_b32 v{t1}, v{t0}")
    e("s_waitcnt lgkmcnt(0)")
    e(f"v_cmp_ne_u32 vcc, 0, v{t1}")
    e(f"s_cmp_lg_u32 s{sREDO}, 0")
    e("s_cbranch_scc1 L_fin")
    e("s_cbranch_vccnz L_redo")
    g.lab("L_fin")
    if opt.probe is not None:
        e("s_waitcnt vmcnt(0)")
        g.stamp()
        e("s_waitcnt lgkmcnt(0)")
        e("s_sub_u32 s64, s62, s60")
        if opt.probegrp:
            e(f"s_cmp_eq_u32 s{sISB}, {0 if opt.probegrp == 'A' else 1}")
            e("s_cselect_b32 s64, s64, 0")
        e("s_add_u32 s64, s64, 6000")
        g.lab("L_dly")
        e("s_sleep 2")
        e("s_memrealtime s[66:67]"); e("s_waitcnt lgkmcnt(0)"); e("s_sub_u32 s65, s66, s60"); e("s_cmp_lt_u32 s65, s64"); e("s_cbranch_scc1 L_dly")
    if opt.stamps:
        e("s_waitcnt vmcnt(0)")
        g.stamp(True)
        e("s_memrealtime s[48:49]")
        e("s_waitcnt lgkmcnt(0)")
        e(f"s_lshl_b32 s36, s2, 3"); e(f"s_add_u32 s36, s36, s{sWID}"); e("s_lshl_b32 s36, s36, 7")
        e("v_mov_b32 v4, s36")
        e(f"v_cmp_eq_u32 vcc, 0, v{vLANE}"); e("s_and_saveexec_b64 s[42:43], vcc")
        e("v_mov_b32 v6, s46"); e("global_store_dword v4, v6, s[44:45] offset:0")
        e("v_mov_b32 v6, s48"); e("global_store_dword v4, v6, s[44:45] offset:4")
        if opt.both:
            for i in range(1, g.nstamp):
                e(f"s_sub_u32 s36, s{50+4*i}, s50"); e("v_mov_b32 v6, s36"); e(f"global_store_dword v4, v6, s[44:45] offset:{4+4*i}")
                e(f"s_sub_u32 s36, s{52+4*i}, s52"); e("v_mov_b32 v6, s36"); e(f"global_store_dword v4, v6, s[44:45] offset:{64+4*i}")
        for i in range(1, 0 if opt.both else g.nstamp):
            e(f"s_sub_u32 s36, s{50+2*i}, s50"); e("v_mov_b32 v6, s36"); e(f"global_store_dword v4, v6, s[44:45] offset:{4+4*i}")
        e("s_waitcnt vmcnt(0)")
    g.lab("L_end")
    e("s_endpgm")
    g.lab("L_redo")
    e("s_barrier")
    e(f"s_mov_b32 s{sREDO}, 1")
    e(f"v_and_b32 v{t0}, 31, v{vLANE}"); e(f"v_lshrrev_b32 v{t1}, 5, v{vLANE}")
    e(f"v_lshlrev_b32 v{t0}, 8, v{t0}"); e(f"v_lshl_add_u32 v{t0}, v{t1}, 4, v{t0}")
    e(f"v_mov_b32 v{vM}, 0xff800000")
    e(f"s_mov_b32 s{sT2}, s{sKVOFF}")
    e(f"s_add_u32 s37, s{sKVOFF}, 131072")
    g.lab("L_redo_loop")
    e("s_waitcnt vmcnt(0)")
    for s in range(8):
        e(f"buffer_load_dwordx4 v[{vK+4*s}:{vK+4*s+3}], v{t0}, s[{sKSRD}:{sKSRD+3}], s{sT2} offen offset:{32*s}")
    e("s_waitcnt vmcnt(0)")
    for s in range(8): e(qk(0, s))
    e("s_nop 15"); e("s_nop 7")
    for i in range(0, 16, 2): e(f"v_max3_f32 v{vM}, v{vM}, v{S0+i}, v{S0+i+1}")
    e(f"s_add_u32 s{sT2}, s{sT2}, 8192")
    e(f"s_cmp_lt_u32 s{sT2}, s37")
    e("s_cbranch_scc1 L_redo_loop")
    e(f"v_mov_b32 v{t0}, v{vM}")
    e("s_nop 1")
    e(f"v_permlane32_swap_b32 v{vM}, v{t0}")
    e(f"v_max_f32 v{vM}, v{vM}, v{t0}")
    e("s_branch L_restart")
    g.L.append('.section .rodata,"a"'); g.L.append(".p2align 6"); g.L.append(f".amdhsa_kernel {KNAME}")
    for l in [f".amdhsa_next_free_vgpr {NV}", ".amdhsa_next_free_sgpr 102", f".amdhsa_accum_offset {NV}", ".amdhsa_group_segment_fixed_size 0",
              ".amdhsa_kernarg_size 48", ".amdhsa_user_sgpr_count 2", ".amdhsa_user_sgpr_kernarg_segment_ptr 1", ".amdhsa_system_sgpr_workgroup_id_x 1"]:
        g.L.append("  " + l)
    g.L.append(".end_amdhsa_kernel")
    g.L.append(f"; nstamp={g.nstamp}")
    return "\n".join(g.L) + "\n"

if __name__ == "__main__":
    ap = argparse.ArgumentParser()
    ap.add_argument("-o", default="standalone__gqa_softmax__near_ridge.s")
    ap.add_argument("--skew", type=int, default=2)
    ap.add_argument("--schedB", default="-1:K1,V0_0:K2,V1,TQ_1:Qa,Qb,K3,V2")
    ap.add_argument("--schedA", default="3:K4,V3_4:K5,V4_5:K6,V5_6:K7,V6_7:V7")
    ap.add_argument("--prescale", action="store_true")
    ap.add_argument("--defer", action="store_true")
    ap.add_argument("--dfill", type=int, default=5)
    ap.add_argument("--fineepi", action="store_true")
    ap.add_argument("--notail", action="store_true")
    ap.add_argument("--prioslot", type=int, default=0)
    ap.add_argument("--lite", action="store_true")
    ap.add_argument("--stflag1", default=None)
    ap.add_argument("--hcount", type=int, default=2)
    ap.add_argument("--no8", action="store_true")
    ap.add_argument("--altpar", action="store_true")
    ap.add_argument("--both", action="store_true")
    ap.add_argument("--fine", action="store_true")
    ap.add_argument("--pkmul", action="store_true")
    ap.add_argument("--spread", type=int, default=1)
    ap.add_argument("--bgap", type=int, default=2)
    ap.add_argument("--prio", type=int, default=0)
    ap.add_argument("--stamps", action="store_true")
    ap.add_argument("--rt", action="store_true")
    ap.add_argument("--probe", type=int, default=None)
    ap.add_argument("--probegrp", default="")
    ap.add_argument("--ldflag", default="")
    ap.add_argument("--qflag", default="")
    ap.add_argument("--stflag", default="sc0 sc1 nt")
    opt = ap.parse_args()
    open(opt.o, "w").write(build(opt))
```

```python
import sys, math, argparse, struct

KNAME = "standalone__gqa_softmax__near_ridge_kernel"
C_SCALE = (128 ** -0.5) * math.log2(math.e)
def f32bits(x): return struct.unpack("<I", struct.pack("<f", x))[0]

class Gen:
    def __init__(self, opt):
        self.o = opt; self.L = []; self.vm = []; self.nstamp = 0; self.nlab = 0; self.ncall = -1
    def e(self, s): self.L.append("    " + s)
    def lab(self, s): self.L.append(s + ":")
    def newlab(self, p="L"):
        self.nlab += 1; return f"{p}_{self.nlab}"
    def vm_issue(self, tag): self.vm.append(tag)
    def vm_wait(self, tags):
        idx = [i for i, t in enumerate(self.vm) if t in tags]
        if not idx: return
        self.e(f"s_waitcnt vmcnt({min(63, len(self.vm) - 1 - max(idx))})")
    def stamp(self):
        if not self.o.stamps: return
        if self.o.both:
            self.ncall += 1
            if self.ncall in (1, 2, 10): return
            i = self.nstamp; self.nstamp += 1
            assert i < 13
            self.e(f"s_memrealtime s[{50+4*i}:{51+4*i}]"); self.e(f"s_memtime s[{52+4*i}:{53+4*i}]")
            return
        i = self.nstamp; self.nstamp += 1
        assert i < 24
        self.e(f"{'s_memrealtime' if self.o.rt else 's_memtime'} s[{50+2*i}:{51+2*i}]")

def parse_sched(txt):
    d = {}
    for tok in txt.replace("_", " ").split():
        j, lst = tok.split(":")
        d[int(j)] = [x for x in lst.split(",") if x]
    return d

def build(opt):
    g = Gen(opt); e = g.e
    R = opt.ring; NS = opt.ns; EQ = opt.earlyq; TIGHT = opt.tight
    KBASE = 0; VBASE = R * 16384
    lds_bytes = 163840
    STG = 2 * R * 16384
    FLAG_OFF = 4 * 16384 if R == 5 else 0
    ldflag = opt.ldflag; qflag = opt.qflag; stflag = opt.stflag
    needK = lambda p: p
    needV = lambda p: p + 1
    schedB = parse_sched(opt.schedB)
    schedA = parse_sched(opt.schedA)
    when = {}
    for d in (schedB, schedA):
        for j, l in d.items():
            for x in l:
                assert x not in when; when[x] = j
    for p in range(8):
        if p > 0:
            w_ = when[f"K{p}"]
            assert w_ < needK(p) and (p < R or w_ >= p - R + 1 + NS) and (R == 4 or p not in (3, 4) or w_ >= 1), f"K{p}"
        w_ = when[f"V{p}"]
        assert w_ < needV(p) and (p < R or w_ >= p - R + 3 - TIGHT + NS) and (R == 4 or p not in (3, 4) or w_ >= NS + 1 - EQ), f"V{p}"
    if R == 4: assert when["Qa"] >= 1 and when["Qb"] >= 1
    assert all(j <= NS + 1 for j in schedB) and all(j >= 2 or j == -1 for j in schedA)
    sKSRD, sVSRD, sQSRD, sOSRD = 8, 12, 16, 20
    sW4K = 24; sKVOFF = 25; sQOFF = 26; sC = 27; sREDO = 28; sTMP = 29; sWID = 30; sT2 = 31; sOST = 37; sKV = 38; sSTG = 39; sISB = 40; sFLAG = 41; sC1 = 36
    vLANE = 0; t0, t1, t2 = 1, 2, 3
    vQ = 4
    vO = 36
    vS = [100, 116]
    vP = [132, 140]
    vK = 148
    vV = 180
    vL = 212
    vONE = 220
    vNM = 224
    vKA = 232
    vVA = 236
    vDK = 244
    vDV = 248
    vOW = 250; vOR = 251; vOS = 252; vIDX = 253
    SP = opt.sparse
    Preg = (lambda n, qb: vP[0] + 8 * qb + 4 * (n & 1)) if SP else (lambda n, qb: vP[n & 1] + 4 * qb)
    NV = 256

    for l in """Kernarg: 0 q, 8 k, 16 v, 24 out, 32 debug, 40 ws.  One workgroup (8 waves x 32 q rows) per (batch, q head).
S^T = K.Q^T and O^T = V^T.P^T with v_mfma_f32_16x16x32_bf16; K/V tiles (64 keys) stream into two LDS rings by LDS-DMA
(XOR-swizzled images, V read with ds_read_b64_tr_b16).  Waves 0-3 lead, waves 4-7 lag by two tiles and load for them meanwhile.
Softmax: p = exp2(c*s - c*m), c = log2(e)/sqrt(D) (folded into Q, and -c*m into the MFMA C input, after the first 64 keys);
row sums by a ones-row (S)MFMA over the bf16 p.  m starts as the exact row max of the first 32 keys (so the row sum is >= 1 and nothing
underflows that the true max would keep).  Run-time check at the end: if any row sum exceeds 2^40 or is not finite, that
stand-in was unsafe and the whole workgroup recomputes with the true row max over all keys (L_redo).""".split("\n"):
        g.L.append("; " + l)
    g.L.append(f"; @launch grid=(256,1,1) block=(512,1,1) lds={lds_bytes}")
    g.L.append('.amdgcn_target "amdgcn-amd-amdhsa--gfx950"')
    g.L.append(".text"); g.L.append(f".globl {KNAME}"); g.L.append(".p2align 8"); g.L.append(f".type {KNAME},@function")
    g.lab(KNAME)
    e("s_load_dwordx4 s[4:7], s[0:1], 0")
    e("s_load_dwordx4 s[32:35], s[0:1], 16")
    g.stamp()
    if opt.stamps: e("s_memrealtime s[46:47]"); e("s_load_dwordx2 s[44:45], s[0:1], 40")
    e("s_cmp_ge_u32 s2, 256")
    e("s_cbranch_scc1 L_end")
    e(f"v_lshrrev_b32 v{t0}, 6, v0")
    e(f"v_and_b32 v{vLANE}, 63, v0")
    e(f"v_readfirstlane_b32 s{sWID}, v{t0}")
    e("s_and_b32 s36, s2, 7")
    e("s_lshr_b32 s37, s2, 3")
    e("s_lshl_b32 s38, s36, 5")
    e("s_add_u32 s38, s38, s37")
    e(f"s_lshl_b32 s{sQOFF}, s38, 16")
    e("s_lshl_b32 s38, s36, 3")
    e("s_lshr_b32 s37, s37, 2")
    e("s_add_u32 s38, s38, s37")
    e(f"s_lshl_b32 s{sKVOFF}, s38, 17")
    e(f"s_mov_b32 s{sREDO}, 0")
    e(f"s_mov_b32 s{sC}, 0x{f32bits(C_SCALE):08x}")
    e(f"s_lshl_b32 s36, s{sWID}, 13")
    e(f"s_add_u32 s{sQOFF}, s{sQOFF}, s36")
    e(f"s_and_b32 s36, s{sWID}, 3")
    e(f"s_lshl_b32 s{sW4K}, s36, 12")
    e(f"s_lshr_b32 s{sISB}, s{sWID}, 2")
    e(f"s_lshl_b32 s{sSTG}, s36, 13")
    if R == 5:
        e(f"s_mul_i32 s{sTMP}, s{sISB}, {VBASE}")
        e(f"s_add_u32 s{sSTG}, s{sSTG}, s{sTMP}")
        e(f"s_add_u32 s{sSTG}, s{sSTG}, {3*16384}")
    else:
        e(f"s_add_u32 s{sSTG}, s{sSTG}, {STG}")
    def srd(d, p, n):
        e(f"s_mov_b32 s{d}, s{p}"); e(f"s_and_b32 s{d+1}, s{p+1}, 0xffff"); e(f"s_mov_b32 s{d+2}, {n}"); e(f"s_mov_b32 s{d+3}, 0x20000")
    g.lab("L_restart")
    e(f"v_lshrrev_b32 v{t0}, 4, v{vLANE}")
    e(f"v_and_b32 v{t1}, 15, v{vLANE}")
    e(f"v_xor_b32 v{t2}, v{t0}, v{t1}")
    e(f"v_lshlrev_b32 v{vDV}, 8, v{t0}")
    e(f"v_lshl_add_u32 v{vDK}, v{t2}, 4, v{vDV}")
    for p in range(1, 4): e(f"v_xor_b32 v{vDK+p}, {64*p}, v{vDK}")
    e(f"v_lshlrev_b32 v{t2}, 1, v{t0}")
    e(f"v_xor_b32 v{t2}, v{t2}, v{t1}")
    e(f"v_lshl_add_u32 v{vDV}, v{t2}, 4, v{vDV}")
    e(f"v_xor_b32 v{vDV+1}, 128, v{vDV}")
    e(f"s_add_u32 s{sKV}, s{sKVOFF}, s{sW4K}")
    e(f"s_mov_b32 s{sFLAG}, 0")
    e("s_waitcnt lgkmcnt(0)")
    srd(sKSRD, 6, 8388608)
    def dma_items(x):
        out = []
        if x == "CP":
            out += ["s_getpc_b64 s[42:43]", f"s_add_u32 s42, s42, s{sW4K}", "s_addc_u32 s43, s43, 0", f"v_lshlrev_b32 v{t0}, 6, v{vLANE}",
                    f"v_mov_b32 v{vO+1}, s43", f"v_add_co_u32 v{vO}, vcc, s42, v{t0}", "s_nop 1", f"v_addc_co_u32 v{vO+1}, vcc, 0, v{vO+1}, vcc"]
            out.append((f"global_load_dword v{vO+2}, v[{vO}:{vO+1}], off", x))
            return out
        if x == "TQ":
            out.append(f"v_lshlrev_b32 v{t0}, 7, v{vLANE}")
            out.append((f"buffer_load_dword v{t1}, v{t0}, s[{sQSRD}:{sQSRD+3}], s{sQOFF} offen", x))
            return out
        if x[0] == "Q":
            half = 0 if x == "Qa" else 1
            out += [f"s_add_u32 m0, s{sSTG}, {4096*half}", f"s_add_u32 s{sTMP}, s{sQOFF}, {4096*half}"]
            for i in range(4):
                out.append((f"buffer_load_dwordx4 v{vDK+i}, s[{sQSRD}:{sQSRD+3}], s{sTMP} offen offset:{1024*i} {qflag} lds", x))
            return out
        kind, p = x[0], int(x[1:])
        base = (KBASE if kind == "K" else VBASE) + (p % R) * 16384
        srdn = sKSRD if kind == "K" else sVSRD
        out += [f"s_add_u32 m0, s{sW4K}, {base}", f"s_add_u32 s{sTMP}, s{sKV}, {p*16384}"]
        for i in range(4):
            va = vDK + i if kind == "K" else vDV + (i & 1)
            out.append((f"buffer_load_dwordx4 v{va}, s[{srdn}:{srdn+3}], s{sTMP} offen offset:{1024*i} {ldflag} lds", x))
        return out
    def emit_items(lst):
        for y in lst:
            if isinstance(y, tuple): e(y[0]); g.vm_issue(y[1])
            else: e(y)
    def dma(x): emit_items(dma_items(x))
    def guarded(lst):
        l = g.newlab("L_nd")
        e(f"s_cmp_lg_u32 s{sISB}, 0"); e(f"s_cbranch_scc1 {l}")
        emit_items(lst)
        g.lab(l)
    def addrs():
        e(f"v_and_b32 v{t0}, 15, v{vLANE}")
        e(f"v_lshrrev_b32 v{t2}, 4, v{vLANE}")
        e(f"v_xor_b32 v{t1}, v{t0}, v{t2}")
        e(f"v_lshlrev_b32 v{t1}, 4, v{t1}")
        e(f"v_lshl_add_u32 v{vKA}, v{t0}, 8, v{t1}")
        for s in range(1, 4): e(f"v_xor_b32 v{vKA+s}, {64*s}, v{vKA}")
        e(f"v_lshrrev_b32 v{t0}, 2, v{vLANE}")
        e(f"v_and_b32 v{t1}, 7, v{t0}")
        e(f"v_lshlrev_b32 v{t1}, 5, v{t1}")
        e(f"v_lshl_add_u32 v{t1}, v{t0}, 8, v{t1}")
        e(f"v_and_b32 v{t0}, 3, v{vLANE}")
        e(f"v_lshl_add_u32 v{t1}, v{t0}, 3, v{t1}")
        e(f"v_add_u32 v{vVA}, {VBASE}, v{t1}")
        for db in range(1, 8): e(f"v_xor_b32 v{vVA+db}, {32*db}, v{vVA}")
        for s in range(4): e(f"v_add_u32 v{vV+s}, s{sSTG}, v{vKA+s}")
        for i in range(4): e(f"v_mov_b32 v{vONE+i}, 0x3f803f80")
        if SP:
            for i in range(8): e(f"v_mov_b32 v{vL+i}, 0")
            e(f"v_and_b32 v{t0}, 1, v{vLANE}"); e(f"v_mul_u32_u24 v{t0}, 0xaaaa, v{t0}"); e(f"v_add_u32 v{t0}, 0x4444, v{t0}")
            e(f"v_lshl_add_u32 v{vIDX}, v{t0}, 16, v{t0}")
        if R == 5: e(f"s_sub_u32 s{sOST}, s{sSTG}, s{sW4K}")
        else: e(f"s_lshl_b32 s{sOST}, s{sWID}, 12"); e(f"s_add_u32 s{sOST}, s{sOST}, {STG}")
        e(f"v_and_b32 v{t0}, 15, v{vLANE}")
        e(f"v_lshlrev_b32 v{t1}, 7, v{t0}")
        e(f"v_and_b32 v{vOW}, 1, v{t2}")
        e(f"v_lshl_add_u32 v{t1}, v{vOW}, 3, v{t1}")
        e(f"v_and_b32 v{t0}, 7, v{t0}")
        e(f"v_lshrrev_b32 v{vOW}, 1, v{t2}")
        e(f"v_xor_b32 v{t0}, v{t0}, v{vOW}")
        e(f"v_lshl_add_u32 v{t1}, v{t0}, 4, v{t1}")
        e(f"v_add_u32 v{vOW}, s{sOST}, v{t1}")
        e(f"v_lshlrev_b32 v{vOR}, 4, v{vLANE}")
        e(f"v_add_u32 v{vOR}, s{sOST}, v{vOR}")
        e(f"v_lshrrev_b32 v{t0}, 3, v{vLANE}")
        e(f"v_and_b32 v{t1}, 7, v{vLANE}")
        e(f"v_xor_b32 v{t1}, v{t1}, v{t0}")
        e(f"v_lshlrev_b32 v{t0}, 8, v{t0}")
        e(f"v_lshl_add_u32 v{vOS}, v{t1}, 4, v{t0}")
        if opt.mscale: selectors()
    vSEL = vO + 32
    def bf16r(x):
        u = f32bits(x); return (u + 0x7fff + ((u >> 16) & 1)) >> 16
    c_hi = bf16r(C_SCALE); c_lo = bf16r(C_SCALE - struct.unpack("<f", struct.pack("<I", c_hi << 16))[0])
    def selectors():
        e(f"v_bfe_u32 v{t0}, v{vLANE}, 2, 2"); e(f"v_lshrrev_b32 v{t1}, 4, v{vLANE}")
        e(f"v_cmp_eq_u32 vcc, v{t0}, v{t1}")
        e(f"v_and_b32 v{t0}, 1, v{vLANE}"); e(f"v_lshlrev_b32 v{t0}, 4, v{t0}")
        e(f"v_and_b32 v{t1}, 2, v{vLANE}")
        e(f"v_cmp_eq_u32 s[42:43], 0, v{t1}")
        for k_, cv in enumerate((c_hi, c_lo)):
            b = vSEL + 6 * k_
            e(f"v_mov_b32 v{t2}, {cv}"); e(f"v_lshlrev_b32 v{t2}, v{t0}, v{t2}")
            e(f"v_cndmask_b32 v{t2}, 0, v{t2}, vcc")
            e(f"v_cndmask_b32 v{b+2}, 0, v{t2}, s[42:43]"); e(f"v_cndmask_b32 v{b+3}, v{t2}, 0, s[42:43]")
            for z in (0, 1, 4, 5): e(f"v_mov_b32 v{b+z}, 0")
    def qread():
        for qb in range(2):
            for s in range(4): e(f"ds_read_b128 v[{vQ+16*qb+4*s}:{vQ+16*qb+4*s+3}], v{vV+s} offset:{4096*qb}")
    needed_at = lambda j: {f"K{p}" for p in range(8) if needK(p) == j} | {f"V{p}" for p in range(8) if needV(p) == j}

    e(f"s_cmp_lg_u32 s{sISB}, 0")
    e("s_cbranch_scc1 L_proB")
    g.vm = []
    dma("K0"); srd(sQSRD, 4, 16777216); dma("Qa"); dma("Qb")
    e(f"s_mov_b32 s{sC1}, s{sC}")
    srd(sVSRD, 32, 8388608); srd(sOSRD, 34, 16777216)
    for x in schedA.get(-1, []): dma(x)
    addrs()
    if opt.prioA: e("s_setprio 1")
    g.vm_wait({"K0"})
    vmA = g.vm
    e("s_branch L_main")
    g.lab("L_proB")
    g.vm = []
    srd(sQSRD, 4, 16777216); srd(sVSRD, 32, 8388608); srd(sOSRD, 34, 16777216)
    addrs()
    for x in schedB.get(-1, []): dma(x)
    if opt.dry:
        e(f"s_mov_b32 s{sFLAG}, 1"); e("s_branch L_scale")
        g.lab("L_dry_ret")
        e(f"s_mov_b32 s{sFLAG}, 0")
    for j in range(NS):
        g.vm_wait(needed_at(j))
        e("s_barrier")
        for x in schedB.get(j, []): dma(x)
    if EQ:
        e(f"s_mov_b32 s{sC1}, 1.0")
        g.vm_wait({"Qa", "Qb"})
        qread()
        e("s_waitcnt lgkmcnt(0)")
        e("s_branch L_scale")
        g.lab("L_scale_ret")
    else:
        e(f"s_mov_b32 s{sC1}, s{sC}")
    g.vm_wait(needed_at(NS))
    vmB = g.vm
    g.lab("L_main")
    g.vm = vmA
    st = {"K": 0, "V": 0}
    def rebias(kind, t):
        want = 65536 if (t % R) == 4 else 0
        out = []
        if st[kind] != want:
            regs = [vKA + s for s in range(4)] if kind == "K" else [vVA + d for d in range(8)]
            out = [f"v_add_u32 v{r_}, {65536 if want else -65536 & 0xffffffff}, v{r_}" for r_ in regs]
            st[kind] = want
        return out
    def kread(n, f):
        t, blk = n >> 1, n & 1; kt, s = f >> 2, f & 3
        off = KBASE + (t % R) * 16384 + blk * 8192 + kt * 4096 - st['K']
        assert 0 <= off < 65536
        return f"ds_read_b128 v[{vK+4*f}:{vK+4*f+3}], v{vKA+s} offset:{off}"
    vreg = lambda n, db: (vK if (opt.tail2 and n == 15) else vV) + 4 * db
    def vread(n, db, h):
        t, blk = n >> 1, n & 1
        d = vreg(n, db) + 2 * h
        off = (t % R) * 16384 + (blk * 32 + 16 * h) * 256 - st['V']
        assert 0 <= off < 65536
        return f"ds_read_b64_tr_b16 v[{d}:{d+1}], v{vVA+db} offset:{off}"
    MF = "v_mfma_f32_16x16x32_bf16"
    def qk(n, m):
        kt, qb, s = m >> 3, (m >> 2) & 1, m & 3
        S = vS[n & 1] + 8 * qb + 4 * kt
        cin = f"v[{S}:{S+3}]" if s else (f"v[{vNM+4*qb}:{vNM+4*qb+3}]" if n >= 2 else "0")
        a = vK + 16 * kt + 4 * s; b = vQ + 16 * qb + 4 * s
        return f"{MF} v[{S}:{S+3}], v[{a}:{a+3}], v[{b}:{b+3}], {cin}"
    def pv(n, db, qb):
        O = vO + 8 * db + 4 * qb; P = Preg(n, qb); a = vreg(n, db)
        cin = "0" if n == 0 else f"v[{O}:{O+3}]"
        return f"{MF} v[{O}:{O+3}], v[{a}:{a+3}], v[{P}:{P+3}], {cin}"
    def rsum(n, qb):
        L = vL + 4 * qb; P = Preg(n, qb)
        cin = "0" if n == 0 else f"v[{L}:{L+3}]"
        return f"{MF} v[{L}:{L+3}], v[{vONE}:{vONE+3}], v[{P}:{P+3}], {cin}"
    def pre(n, i): return f"v_fma_f32 v{vS[n&1]+i}, v{vS[n&1]+i}, s{sC1}, v{vNM+4*(i>>3)}" if n < 2 else None
    def exp(n, i): return f"v_exp_f32 v{vS[n&1]+i}, v{vS[n&1]+i}"
    def rs64(qb):
        L = vL + 4 * qb; P = vP[0] + 8 * qb
        return f"v_smfmac_f32_16x16x64_bf16 v[{L}:{L+3}], v[{vONE}:{vONE+3}], v[{P}:{P+7}], v{vIDX}"
    def cvt(n, k): return f"v_cvt_pk_bf16_f32 v{Preg(n, k >> 2) + (k & 3)}, v{vS[n&1]+2*k}, v{vS[n&1]+2*k+1}"
    def scaleq(r_):
        return [f"v_lshlrev_b32 v{t0}, 16, v{r_}", f"v_and_b32 v{t1}, 0xffff0000, v{r_}",
                f"v_mul_f32 v{t0}, s{sC}, v{t0}", f"v_mul_f32 v{t1}, s{sC}, v{t1}", f"v_cvt_pk_bf16_f32 v{r_}, v{t0}, v{t1}"]
    def both_wait(t):
        n = 63
        for vm, j in ((vmA, t), (vmB, t + NS)):
            idx = [i for i, x in enumerate(vm) if x in needed_at(j)]
            if idx: n = min(n, len(vm) - 1 - max(idx))
        return [f"s_waitcnt vmcnt({n})"] if n < 63 else []
    def rowmax(dst, srcs, u):
        out = []
        out.append(f"v_max3_f32 v{dst}, v{srcs[0]}, v{srcs[1]}, v{srcs[2]}")
        out.append(f"v_max3_f32 v{u}, v{srcs[3]}, v{srcs[4]}, v{srcs[5]}")
        out.append(f"v_max3_f32 v{dst}, v{dst}, v{srcs[6]}, v{srcs[7]}")
        out.append(f"v_max_f32 v{dst}, v{dst}, v{u}")
        return out
    def xlane(regs, us):
        for op in ("v_permlane32_swap_b32", "v_permlane16_swap_b32"):
            for r_, u in zip(regs, us): e(f"v_mov_b32 v{u}, v{r_}")
            e("s_nop 1")
            for r_, u in zip(regs, us): e(f"{op} v{r_}, v{u}")
            for r_, u in zip(regs, us): e(f"v_max_f32 v{r_}, v{r_}, v{u}")

    g.stamp()
    e("s_barrier")
    g.stamp()
    for f in range(8): e(kread(0, f))
    e(f"s_cmp_lg_u32 s{sISB}, 0"); e("s_cbranch_scc1 L_bq")
    g.vm_wait({"Qb"})
    if EQ: qread()
    e("s_branch L_haveq")
    g.lab("L_bq")
    g.vm = vmB
    for x in schedB.get(NS, []): dma(x)
    if not EQ: g.vm_wait({"Qa", "Qb"})
    g.vm = vmA
    g.lab("L_haveq")
    if not EQ: qread()
    e("s_waitcnt lgkmcnt(0)")
    g.stamp()
    if opt.prio0: e("s_setprio 1")
    S0 = vS[0]
    for m in range(16):
        e(qk(0, m))
        if (m >> 2) & 1: e(kread(1, 4 * (m >> 3) + (m & 3)))
    e("s_waitcnt lgkmcnt(4)")
    for m in range(4): e(qk(1, m))
    e("s_nop 3")
    e(f"s_cmp_lg_u32 s{sREDO}, 0")
    e("s_cbranch_scc1 L_have_m")
    u = vV + 8
    a_ = rowmax(vNM, [S0 + i for i in range(8)], u); b_ = rowmax(vNM + 4, [S0 + 8 + i for i in range(8)], u + 1)
    for x, y in zip(a_, b_): e(x); e(y)
    xlane([vNM, vNM + 4], [u, u + 1])
    e(f"v_mul_f32 v{vNM}, s{sC1}, v{vNM}"); e(f"v_mul_f32 v{vNM+4}, s{sC1}, v{vNM+4}")
    e(f"v_sub_f32 v{vNM}, 0, v{vNM}"); e(f"v_sub_f32 v{vNM+4}, 0, v{vNM+4}")
    g.lab("L_have_m")
    e(pre(0, 0))
    mf = [qk(1, m) for m in range(4, 16)]
    for i in range(10):
        if i == 2: e("s_waitcnt lgkmcnt(0)")
        if mf: e(mf.pop(0))
        e(pre(0, i + 1)); e(exp(0, i))
        if i % 2 == 0 and i >= 2: e(cvt(0, i // 2 - 1))
        if i >= 8 and mf: e(mf.pop(0))
    assert not mf
    if opt.bearly:
        assert not EQ
        e(f"s_cmp_lg_u32 s{sISB}, 0"); e("s_cbranch_scc1 L_scale")
        g.lab("L_scale_ret")
    for x in both_wait(1): e(x)
    e("s_barrier")
    if schedB.get(NS + 1):
        e(f"s_cmp_eq_u32 s{sISB}, 0"); e("s_cbranch_scc1 L_noB1")
        g.vm = vmB
        for x in schedB[NS + 1]: dma(x)
        g.vm = vmA
        g.lab("L_noB1")
    if opt.mscale:
        assert not (EQ or opt.bearly or opt.dry)
        rd0 = [kread(2, f) for f in range(8)] + [vread(0, db, h) for db in range(8) for h in range(2)][:11]
        va = []
        for i in range(10, 16):
            va.append([pre(0, i + 1) if i < 15 else pre(1, 0)]); va.append([exp(0, i)])
            if i % 2 == 0: va.append([cvt(0, i // 2 - 1)])
        va += [[f"v_mov_b32 v{vNM+4*qb+i}, v{vNM+4*qb}"] for qb in range(2) for i in range(1, 4)]
        def sm(f, k_):
            D = vO + 8 * (f & 1) + 4 * (k_ >> 1); a = vSEL + 6 * (k_ & 1) + (2 if k_ < 2 else 0); b = vQ + 4 * f
            return f"{MF} v[{D}:{D+3}], v[{a}:{a+3}], v[{b}:{b+3}], " + ("0" if k_ % 2 == 0 else f"v[{D}:{D+3}]")
        def sc(f, j): D = vO + 8 * (f & 1); return f"v_cvt_pk_bf16_f32 v{vQ+4*f+j}, v{D+2*j}, v{D+2*j+1}"
        for f in range(9):
            for k_ in range(4):
                if f < 8: e(sm(f, k_))
                elif k_ == 0: e("s_nop 3")
                fl = []
                if f >= 1 and k_ >= 2: fl += [sc(f - 1, 2 * (k_ - 2)), sc(f - 1, 2 * (k_ - 2) + 1)]
                elif f < 8:
                    if rd0: fl.append(rd0.pop(0))
                    if rd0 and k_ == 0 and f < 3: fl.append(rd0.pop(0))
                    elif va: fl += va.pop(0)
                    if f == 0 and va: fl += va.pop(0)
                for x in fl: e(x)
        for x in rd0: e(x)
        for y in va:
            for x in y: e(x)
    else:
        rd0 = [kread(2, f) for f in range(8)] + [vread(0, db, h) for db in range(8) for h in range(2)][:11]
        for i in range(10, 16):
            for _ in range(4):
                if rd0: e(rd0.pop(0))
            e(pre(0, i + 1) if i < 15 else pre(1, 0)); e(exp(0, i))
            if i % 2 == 0: e(cvt(0, i // 2 - 1))
        for qb in range(2):
            for i in range(1, 4): e(f"v_mov_b32 v{vNM+4*qb+i}, v{vNM+4*qb}")
        if opt.bearly or EQ: e(f"s_cmp_lg_u32 s{sISB}, 0"); e("s_cbranch_scc1 L_scale_done")
        g.lab("L_scale")
        for r_ in range(vQ, vQ + 32):
            for x in scaleq(r_): e(x)
        if opt.bearly or EQ:
            e(f"s_cmp_lg_u32 s{sISB}, 0"); e("s_cbranch_scc1 L_scale_ret")
            g.lab("L_scale_done")
        if opt.dry: e(f"s_cmp_lg_u32 s{sFLAG}, 0"); e("s_cbranch_scc1 L_dry_ret")
    if opt.prio0: e("s_setprio 0")
    g.stamp()
    plan = {0: [("Vp", 5, 1)], 1: [("Vp", 6, 0), ("Vp", 6, 1)], 2: [("Vp", 7, 0)], 3: [("Vp", 7, 1), ("K", 0)], 4: [("K", 1)],
            5: [("K", 2), ("K", 3)], 6: [("K", 4)], 7: [("K", 5), ("K", 6)], 8: [("K", 7)], 9: [("V", 0, 0), ("V", 0, 1)],
            10: [("V", 1, 0)], 11: [("V", 1, 1), ("V", 2, 0)], 12: [("V", 2, 1)], 13: [("V", 3, 0), ("V", 3, 1)], 14: [("V", 4, 0)], 15: [("V", 4, 1), ("V", 5, 0)]}
    ea = [f"v_mov_b32 v{vKA}, v{vOW}"] + [f"v_xor_b32 v{vKA+j}, {32*j}, v{vOW}" for j in range(1, 4)] + [f"s_add_u32 s{sT2}, s{sQOFF}, 4096", f"s_mov_b32 s{sTMP}, 0x{f32bits(2.0**40):08x}"]
    plan0 = plan
    planT = {0: [("Vp", 5, 1)], 1: [("Vp", 6, 0), ("Vp", 6, 1)], 2: [("Vp", 7, 0), ("Vp", 7, 1)], 3: [], 4: [("K", 0)], 5: [("K", 1), ("K", 2)],
             6: [("K", 3)], 7: [("K", 4), ("K", 5)], 8: [("K", 6)], 9: [("K", 7), ("V", 0, 0)], 10: [("V", 0, 1)], 11: [("V", 1, 0), ("V", 1, 1)],
             12: [("V", 2, 0)], 13: [("V", 2, 1), ("V", 3, 0)], 14: [("V", 3, 1)], 15: [("V", 4, 0), ("V", 4, 1), ("V", 5, 0)]}
    pend = []
    for n in range(1, 15):
        hasbar = (n % 2 == 0)
        tight = TIGHT and hasbar
        plan = planT if tight else plan0
        if n == 14 and opt.tail2:
            assert tight
            plan = dict(planT)
            plan.update({4: [("W", 0, 0)], 5: [("W", 0, 1), ("W", 1, 0)], 6: [("W", 1, 1)], 7: [("W", 2, 0), ("W", 2, 1)],
                         8: [("W", 3, 0)], 9: [("W", 3, 1), ("V", 0, 0)]})
        BP = 4 if tight else 3
        if n == opt.prioslot: e("s_setprio 2")
        e("s_waitcnt lgkmcnt(11)")
        for pr in range(16):
            if pr == 8:
                if not SP: e(rsum(n - 1, 0))
                elif n % 2 == 0: e(rs64(1))
                e(f"s_waitcnt lgkmcnt({(6 if tight else 7) if (n < 14 or opt.tail2) else 0})")
            m0_, m1_ = (qk(n + 1, 2 * pr), qk(n + 1, 2 * pr + 1)) if pr < 8 else (pv(n - 1, pr - 8, 0), pv(n - 1, pr - 8, 1))
            def mid():
                if pr == BP:
                    if hasbar:
                        t = n // 2 + 1
                        lg = ["s_waitcnt lgkmcnt(0)"] if tight else []
                        bw = both_wait(t)
                        blk = ([bw[0] + " lgkmcnt(0)"] if (bw and lg) else bw + lg) + ["s_barrier"]
                        if t >= 9 - NS:
                            idx = [i for i, x in enumerate(vmA) if x in needed_at(t)]
                            guarded([f"s_waitcnt vmcnt({len(vmA) - 1 - max(idx)})" + (" lgkmcnt(0)" if lg else ""), "s_barrier"])
                        else:
                            for x in blk: e(x)
                        for x in schedA.get(t, []):
                            it = dma_items(x)
                            if opt.dblk == 1:
                                pend.append(it[:3])
                                for y in it[3:]: pend.append([y])
                            elif opt.dblk == 2: pend.append(it[:4]); pend.append(it[4:])
                            elif opt.dblk == 4 or not pend: pend.append(it)
                            else: pend[-1] = pend[-1] + it
                    if n < 14:
                        for x in rebias("K", (n + 2) >> 1): e(x)
                if pr == 9:
                    for x in rebias("V", n >> 1): e(x)
            def fill(prr, nn):
                for r_ in plan[prr]:
                    if r_[0] == "K":
                        if nn < 14: e(kread(nn + 2, r_[1]))
                    elif r_[0] == "W": e(vread(15, r_[1], r_[2]))
                    elif r_[0] == "E": e(ea.pop(0))
                    elif r_[0] == "Vp": e(vread(nn - 1, r_[1], r_[2]))
                    else: e(vread(nn, r_[1], r_[2]))
                if n == 1 and pr < 15: e(pre(1, pr + 1))
                if tight and pr in (2, 4): pass
                elif tight and pr == 3: e(cvt(n, 0)); e(cvt(n, 1))
                elif pr % 2 == 0: e(cvt(n, pr // 2 - 1) if pr else cvt(n - 1, 7))
            e(m0_)
            e(exp(n, pr))
            e(m1_)
            mid()
            fill(pr, n)
            if pend and pr >= opt.dstart and pr % opt.spread == opt.spread - 1: guarded(pend.pop(0))
        if not SP: e(rsum(n - 1, 1))
        elif n % 2 == 1: e(rs64(0))
        if n % 2 == 1 or n == 14:
            for blk in pend: guarded(blk)
            pend = []
        if n % 2 == 0: g.stamp()
    if opt.tail2:
        lq = [(14, db, h) for db in range(6) for h in range(2)][:11]
        todo = [(14, 5, 1), (14, 6, 0), (14, 6, 1), (14, 7, 0), (14, 7, 1)] + [(15, db, h) for db in range(4, 8) for h in range(2)]
        def lwait(tags): e(f"s_waitcnt lgkmcnt({len(lq) - 1 - max(lq.index(x) for x in tags)})")
        for db in range(8):
            if db in (0, 2, 5): lwait([(14, d, h) for d in {0: (0, 1), 2: (2, 3, 4), 5: (5, 6, 7)}[db] for h in range(2)])
            e(pv(14, db, 0))
            if db == 0: e(cvt(14, 7))
            e(exp(15, 2 * db))
            if db == 0: e(ea.pop(0))
            e(pv(14, db, 1)); e(exp(15, 2 * db + 1))
            for _ in range(2):
                if todo: x = todo.pop(0); e(vread(*x)); lq.append(x)
            if db: e(cvt(15, db - 1))
            if db == 6: e(rs64(0))
            if ea and db >= 1: e(ea.pop(0))
        assert not todo and not ea and SP and opt.qtail
    else:
        e(cvt(14, 7))
        for x in [vread(14, 5, 1), vread(14, 6, 0), vread(14, 6, 1), vread(14, 7, 0), vread(14, 7, 1)]: e(x)
        e("s_waitcnt lgkmcnt(5)")
        for db in range(8):
            if db == 5: e("s_waitcnt lgkmcnt(10)")
            e(pv(14, db, 0)); e(exp(15, 2 * db))
            e(pv(14, db, 1)); e(exp(15, 2 * db + 1))
            e(vread(15, db, 0)); e(vread(15, db, 1))
            if db: e(cvt(15, db - 1))
            if db == 0 and not SP: e(rsum(14, 0))
            if db == 4 and not SP: e(rsum(14, 1))
            if db == 6 and SP: e(rs64(0))
            if ea and db >= 2: e(ea.pop(0))
    e(cvt(15, 7))
    g.stamp()
    rc = [t1, t2]
    if opt.pkmul: rc = [vONE, vONE + 2]
    def muls(db):
        if opt.pkmul:
            return [f"v_pk_mul_f32 v[{vO+8*db+4*qb+r_}:{vO+8*db+4*qb+r_+1}], v[{vO+8*db+4*qb+r_}:{vO+8*db+4*qb+r_+1}], v[{rc[qb]}:{rc[qb]+1}] op_sel_hi:[1,0]" for qb in range(2) for r_ in (0, 2)]
        return [f"v_mul_f32 v{vO+8*db+4*qb+r_}, v{rc[qb]}, v{vO+8*db+4*qb+r_}" for qb in range(2) for r_ in range(4)]
    def pack(db, Rr):
        out = []
        for qb in range(2):
            O = vO + 8 * db + 4 * qb
            out += [f"v_cvt_pk_bf16_f32 v{Rr+2*qb}, v{O}, v{O+1}", f"v_cvt_pk_bf16_f32 v{Rr+2*qb+1}, v{O+2}, v{O+3}",
                    f"ds_write_b64 v{vKA+(db&3)}, v[{Rr+2*qb}:{Rr+2*qb+1}] offset:{2048*qb}"]
        return out
    def rd(D): return [f"ds_read_b128 v[{D+4*i}:{D+4*i+3}], v{vOR} offset:{1024*i}" for i in range(4)]
    def stv(h, i, D): return f"buffer_store_dwordx4 v[{D+4*i}:{D+4*i+3}], v{vOS}, s[{sOSRD}:{sOSRD+3}], s{sQOFF if i < 2 else sT2} offen offset:{128*h+2048*(i&1)} {stflag}"
    if opt.qtail:
        assert SP and not opt.pkmul
        def nrm(db, qb):
            O = vO + 8 * db + 4 * qb; Rr = (vV if opt.tail2 else vK) + 4 * db + 2 * qb
            return [f"v_mul_f32 v{O+r_}, v{rc[qb]}, v{O+r_}" for r_ in range(4)] + [f"v_cvt_pk_bf16_f32 v{Rr}, v{O}, v{O+1}", f"v_cvt_pk_bf16_f32 v{Rr+1}, v{O+2}, v{O+3}",
                    f"ds_write_b64 v{vKA+(db&3)}, v[{Rr}:{Rr+1}] offset:{2048*qb}"]
        Dq = lambda qb, h: vS[0] + 16 * h + 8 * qb
        def rdq(qb, h): return [f"ds_read_b128 v[{Dq(qb,h)+4*i}:{Dq(qb,h)+4*i+3}], v{vOR} offset:{2048*qb+1024*i}" for i in range(2)]
        def stq(qb, h, i): return f"buffer_store_dwordx4 v[{Dq(qb,h)+4*i}:{Dq(qb,h)+4*i+3}], v{vOS}, s[{sOSRD}:{sOSRD+3}], s{sQOFF if qb == 0 else sT2} offen offset:{128*h+2048*i} {stflag}"
        e("s_nop 0" if opt.tail2 else "s_waitcnt lgkmcnt(8)")
        e(pv(15, 0, 0)); e(f"v_add_f32 v{vL}, v{vL}, v{vL+1}")
        e(rs64(1))
        e(pv(15, 1, 0)); e(f"v_rcp_f32 v{rc[0]}, v{vL}")
        e(pv(15, 2, 0)); e(f"v_cmp_nge_f32 vcc, s{sTMP}, v{vL}")
        e(pv(15, 3, 0)); e("s_waitcnt lgkmcnt(0)")
        w0 = nrm(0, 0)
        for db in range(4, 8):
            e(pv(15, db, 0))
            if db >= 5: e(w0.pop(0)); e(w0.pop(0))
        e(f"v_add_f32 v{vL+4}, v{vL+4}, v{vL+5}")
        fl = w0 + [f"v_rcp_f32 v{rc[1]}, v{vL+4}"] + nrm(1, 0) + [f"v_cmp_nge_f32 s[42:43], s{sTMP}, v{vL+4}"] + nrm(2, 0) + nrm(3, 0) + rdq(0, 0) + nrm(4, 0) + nrm(5, 0)
        for db in range(8):
            e(pv(15, db, 1))
            for _ in range(opt.qfill):
                if fl: e(fl.pop(0))
        for x in fl: e(x)
        e("s_or_b64 vcc, vcc, s[42:43]")
        e(f"s_cselect_b32 s{sFLAG}, 1, 0")
        e("s_waitcnt lgkmcnt(2)")
        e(stq(0, 0, 0))
        for x in nrm(6, 0): e(x)
        e(stq(0, 0, 1))
        for x in nrm(7, 0) + rdq(0, 1) + nrm(0, 1) + nrm(1, 1): e(x)
        e("s_waitcnt lgkmcnt(2)")
        e(stq(0, 1, 0))
        for x in nrm(2, 1): e(x)
        e(stq(0, 1, 1))
        for x in nrm(3, 1) + rdq(1, 0) + nrm(4, 1) + nrm(5, 1): e(x)
        e("s_waitcnt lgkmcnt(2)")
        e(stq(1, 0, 0))
        for x in nrm(6, 1): e(x)
        e(stq(1, 0, 1))
        for x in nrm(7, 1) + rdq(1, 1): e(x)
        e("s_waitcnt lgkmcnt(1)"); e(stq(1, 1, 0))
        e("s_waitcnt lgkmcnt(0)"); e(stq(1, 1, 1))
    else:
        if SP:
            e("s_waitcnt lgkmcnt(8)")
            e(pv(15, 0, 0)); e(rs64(1)); e(pv(15, 0, 1))
            for db in range(1, 4): e(pv(15, db, 0)); e(pv(15, db, 1))
            e("s_waitcnt lgkmcnt(0)")
            e(f"v_add_f32 v{vL}, v{vL}, v{vL+1}"); e(f"v_add_f32 v{vL+4}, v{vL+4}, v{vL+5}")
        else:
            e(rsum(15, 0))
            e("s_waitcnt lgkmcnt(8)")
            e(rsum(15, 1))
            for db in range(4): e(pv(15, db, 0)); e(pv(15, db, 1))
            e("s_waitcnt lgkmcnt(0)")
        e(f"v_rcp_f32 v{rc[0]}, v{vL}"); e(pv(15, 4, 0))
        e(f"v_rcp_f32 v{rc[1]}, v{vL+4}"); e(pv(15, 4, 1))
        e(f"v_cmp_nge_f32 vcc, s{sTMP}, v{vL}")
        e(f"v_cmp_nge_f32 s[42:43], s{sTMP}, v{vL+4}")
        ms = [pv(15, db, qb) for db in range(5, 8) for qb in range(2)]
        if opt.pkmul:
            for x in ms: e(x)
            ms = []
            e("s_setprio 3")
            for db in range(8):
                if db == 5: e("s_nop 0")
                for x in muls(db): e(x)
            e(f"s_setprio {opt.epiprio}")
            muls = lambda db: []
        elif opt.epiprio: e(f"s_setprio {opt.epiprio}")
        first = muls(0) + pack(0, vK) + muls(1) + pack(1, vK + 4)
        for k_, x in enumerate(first):
            if k_ % (2 if opt.pkmul else 3) == 0 and ms: e(ms.pop(0))
            e(x)
        assert not ms
        if opt.prioA or opt.prioslot: e("s_setprio 0")
        e("s_or_b64 vcc, vcc, s[42:43]")
        e(f"s_cselect_b32 s{sFLAG}, 1, 0")
        for db in (2, 3):
            for x in muls(db) + pack(db, vK + 4 * db): e(x)
        for x in rd(vS[0]): e(x)
        for x in muls(4) + pack(4, vK + 16) + muls(5): e(x)
        e("s_waitcnt lgkmcnt(2)")
        rest = pack(5, vK + 20) + muls(6) + pack(6, vK + 24) + muls(7)
        q4 = len(rest) // 4
        for i in range(4):
            e(stv(0, i, vS[0]))
            for x in rest[i * q4:(i + 1) * q4 if i < 3 else None]: e(x)
        for x in pack(7, vK + 28): e(x)
        for x in rd(vS[1]): e(x)
        for i in range(4):
            e(f"s_waitcnt lgkmcnt({3-i})"); e(stv(1, i, vS[1]))
    g.stamp()
    if opt.drainstamp: e("s_waitcnt vmcnt(0)"); g.stamp()
    e(f"s_lshl_b32 s{sT2}, s{sWID}, 2")
    e(f"s_add_u32 s{sT2}, s{sT2}, {FLAG_OFF}")
    e(f"v_mov_b32 v{t0}, s{sT2}")
    e(f"v_mov_b32 v{t1}, s{sFLAG}")
    e(f"ds_write_b32 v{t0}, v{t1}")
    e("s_waitcnt lgkmcnt(0)")
    e("s_barrier")
    e(f"v_and_b32 v{t0}, 7, v{vLANE}")
    e(f"v_lshlrev_b32 v{t0}, 2, v{t0}")
    e(f"v_add_u32 v{t0}, {FLAG_OFF}, v{t0}")
    e(f"ds_read_b32 v{t1}, v{t0}")
    e("s_waitcnt lgkmcnt(0)")
    e(f"v_cmp_ne_u32 vcc, 0, v{t1}")
    e(f"s_cmp_lg_u32 s{sREDO}, 0")
    e("s_cbranch_scc1 L_fin")
    e("s_cbranch_vccnz L_redo")
    g.lab("L_fin")
    if opt.stamps:
        e("s_waitcnt vmcnt(0)")
        g.stamp()
        e("s_memrealtime s[48:49]")
        e("s_waitcnt lgkmcnt(0)")
        e(f"s_lshl_b32 s36, s2, 3"); e(f"s_add_u32 s36, s36, s{sWID}"); e("s_lshl_b32 s36, s36, 7")
        e("v_mov_b32 v4, s36")
        e(f"v_cmp_eq_u32 vcc, 0, v{vLANE}"); e("s_and_saveexec_b64 s[42:43], vcc")
        e("v_mov_b32 v6, s46"); e("global_store_dword v4, v6, s[44:45] offset:0")
        e("v_mov_b32 v6, s48"); e("global_store_dword v4, v6, s[44:45] offset:4")
        for i in range(1, g.nstamp):
            if opt.both:
                e(f"s_sub_u32 s36, s{50+4*i}, s50"); e("v_mov_b32 v6, s36"); e(f"global_store_dword v4, v6, s[44:45] offset:{4+4*i}")
                e(f"s_sub_u32 s36, s{52+4*i}, s52"); e("v_mov_b32 v6, s36"); e(f"global_store_dword v4, v6, s[44:45] offset:{64+4*i}")
            else:
                e(f"s_sub_u32 s36, s{50+2*i}, s50"); e("v_mov_b32 v6, s36"); e(f"global_store_dword v4, v6, s[44:45] offset:{4+4*i}")
        e("s_waitcnt vmcnt(0)")
    g.lab("L_end")
    e("s_endpgm")
    g.lab("L_redo")
    e("s_barrier")
    e(f"s_mov_b32 s{sREDO}, 1")
    e(f"v_and_b32 v{t0}, 15, v{vLANE}"); e(f"v_lshrrev_b32 v{t1}, 4, v{vLANE}")
    e(f"v_lshlrev_b32 v{t0}, 8, v{t0}"); e(f"v_lshl_add_u32 v{t0}, v{t1}, 4, v{t0}")
    e(f"v_add_u32 v{t2}, 4096, v{t0}")
    e(f"v_mov_b32 v{vNM}, 0xff800000"); e(f"v_mov_b32 v{vNM+4}, 0xff800000")
    e(f"s_mov_b32 s{sT2}, s{sKVOFF}")
    e(f"s_add_u32 s43, s{sKVOFF}, 131072")
    g.lab("L_redo_loop")
    e("s_waitcnt vmcnt(0)")
    for f in range(8):
        e(f"buffer_load_dwordx4 v[{vK+4*f}:{vK+4*f+3}], v{t2 if f >= 4 else t0}, s[{sKSRD}:{sKSRD+3}], s{sT2} offen offset:{64*(f&3)}")
    e("s_waitcnt vmcnt(0)")
    for m in range(16): e(qk(0, m))
    e("s_nop 15")
    for qb in range(2):
        for i in range(0, 8, 2): e(f"v_max3_f32 v{vNM+4*qb}, v{vNM+4*qb}, v{S0+8*qb+i}, v{S0+8*qb+i+1}")
    e(f"s_add_u32 s{sT2}, s{sT2}, 8192")
    e(f"s_cmp_lt_u32 s{sT2}, s43")
    e("s_cbranch_scc1 L_redo_loop")
    xlane([vNM, vNM + 4], [t0, t1])
    e(f"v_sub_f32 v{vNM}, 0, v{vNM}"); e(f"v_sub_f32 v{vNM+4}, 0, v{vNM+4}")
    e("s_branch L_restart")
    if "CP" in when: g.L.append(".fill 1024, 4, 0xbf800000")
    g.L.append('.section .rodata,"a"'); g.L.append(".p2align 6"); g.L.append(f".amdhsa_kernel {KNAME}")
    for l in [f".amdhsa_next_free_vgpr {NV}", ".amdhsa_next_free_sgpr 102", f".amdhsa_accum_offset {NV}", ".amdhsa_group_segment_fixed_size 0",
              ".amdhsa_kernarg_size 48", ".amdhsa_user_sgpr_count 2", ".amdhsa_user_sgpr_kernarg_segment_ptr 1", ".amdhsa_system_sgpr_workgroup_id_x 1"]:
        g.L.append("  " + l)
    g.L.append(".end_amdhsa_kernel")
    g.L.append(f"; nstamp={g.nstamp}")
    return "\n".join(g.L) + "\n"

if __name__ == "__main__":
    ap = argparse.ArgumentParser()
    ap.add_argument("-o", default="standalone__gqa_softmax__near_ridge.s")
    ap.add_argument("--schedB", default="-1:K1,V0,CP_0:K2,V1,TQ_1:Qa,Qb_2:K3,V2")
    ap.add_argument("--schedA", default="3:K4,V3_4:K5,V4_5:K6,V5_6:K7,V6_7:V7")
    ap.add_argument("--dblk", type=int, default=4)
    ap.add_argument("--dstart", type=int, default=0)
    ap.add_argument("--prio0", action="store_true")
    ap.add_argument("--codepf", action="store_true")
    ap.add_argument("--dry", action="store_true")
    ap.add_argument("--bearly", action="store_true")
    ap.add_argument("--ns", type=int, default=2)
    ap.add_argument("--earlyq", type=int, default=0)
    ap.add_argument("--tight", type=int, default=0)
    ap.add_argument("--mscale", action="store_true")
    ap.add_argument("--pkmul", action="store_true")
    ap.add_argument("--sparse", action="store_true")
    ap.add_argument("--prioA", action="store_true")
    ap.add_argument("--prioslot", type=int, default=0)
    ap.add_argument("--ring", type=int, default=5)
    ap.add_argument("--epiprio", type=int, default=0)
    ap.add_argument("--qtail", action="store_true")
    ap.add_argument("--qfill", type=int, default=3)
    ap.add_argument("--tail2", action="store_true")
    ap.add_argument("--spread", type=int, default=1)
    ap.add_argument("--stamps", action="store_true")
    ap.add_argument("--rt", action="store_true")
    ap.add_argument("--both", action="store_true")
    ap.add_argument("--drainstamp", action="store_true")
    ap.add_argument("--ldflag", default="")
    ap.add_argument("--qflag", default="")
    ap.add_argument("--stflag", default="sc0 sc1 nt")
    opt = ap.parse_args()
    open(opt.o, "w").write(build(opt))
```

```python
import sys, math, argparse, struct

KNAME = "standalone__gqa_softmax__near_ridge_kernel"
C_SCALE = (128 ** -0.5) * math.log2(math.e)
def f32bits(x): return struct.unpack("<I", struct.pack("<f", x))[0]

class Gen:
    def __init__(self, opt):
        self.o = opt; self.L = []; self.vm = []; self.nstamp = 0; self.nlab = 0; self.ncall = -1
    def e(self, s): self.L.append("    " + s)
    def lab(self, s): self.L.append(s + ":")
    def newlab(self, p="L"):
        self.nlab += 1; return f"{p}_{self.nlab}"
    def vm_issue(self, tag): self.vm.append(tag)
    def vm_wait(self, tags):
        idx = [i for i, t in enumerate(self.vm) if t in tags]
        if not idx: return
        self.e(f"s_waitcnt vmcnt({min(63, len(self.vm) - 1 - max(idx))})")
    def stamp(self):
        if not self.o.stamps: return
        if self.o.both:
            self.ncall += 1
            if self.ncall in (1, 2, 10): return
            i = self.nstamp; self.nstamp += 1
            assert i < 13
            self.e(f"s_memrealtime s[{50+4*i}:{51+4*i}]"); self.e(f"s_memtime s[{52+4*i}:{53+4*i}]")
            return
        i = self.nstamp; self.nstamp += 1
        assert i < 24
        self.e(f"{'s_memrealtime' if self.o.rt else 's_memtime'} s[{50+2*i}:{51+2*i}]")

def parse_sched(txt):
    d = {}
    for tok in txt.replace("_", " ").split():
        j, lst = tok.split(":")
        d[int(j)] = [x for x in lst.split(",") if x]
    return d

def build(opt):
    g = Gen(opt); e = g.e
    R = opt.ring; NS = opt.ns; EQ = opt.earlyq; TIGHT = opt.tight
    KBASE = 0; VBASE = R * 16384
    lds_bytes = 163840
    STG = 2 * R * 16384
    FLAG_OFF = 4 * 16384 if R == 5 else 0
    ldflag = opt.ldflag; qflag = opt.qflag; stflag = opt.stflag
    needK = lambda p: p
    needV = lambda p: p + 1
    schedB = parse_sched(opt.schedB)
    schedA = parse_sched(opt.schedA)
    when = {}
    for d in (schedB, schedA):
        for j, l in d.items():
            for x in l:
                assert x not in when; when[x] = j
    for p in range(8):
        if p > 0:
            w_ = when[f"K{p}"]
            assert w_ < needK(p) and (p < R or w_ >= p - R + 1 + NS) and (R == 4 or p not in (3, 4) or w_ >= 1), f"K{p}"
        w_ = when[f"V{p}"]
        assert w_ < needV(p) and (p < R or w_ >= p - R + 3 - TIGHT + NS) and (R == 4 or p not in (3, 4) or w_ >= NS + 1 - EQ), f"V{p}"
    if R == 4: assert when["Qa"] >= 1 and when["Qb"] >= 1
    assert all(j <= NS + 1 for j in schedB) and all(j >= 2 or j == -1 for j in schedA)
    sKSRD, sVSRD, sQSRD, sOSRD = 8, 12, 16, 20
    sW4K = 24; sKVOFF = 25; sQOFF = 26; sC = 27; sREDO = 28; sTMP = 29; sWID = 30; sT2 = 31; sOST = 37; sKV = 38; sSTG = 39; sISB = 40; sFLAG = 41; sC1 = 36; sPF = 3
    vLANE = 0; t0, t1, t2 = 1, 2, 3
    vQ = 4
    vO = 36
    vS = [100, 116]
    vP = [132, 140]
    vK = 148
    vV = 180
    vL = 212
    vONE = 220
    vNM = 224
    vKA = 232
    vVA = 236
    vDK = 244
    vDV = 248
    vOW = 250; vOR = 251; vOS = 252; vIDX = 253; vPF = 254; vPFD = 255
    SP = opt.sparse
    Preg = (lambda n, qb: vP[0] + 8 * qb + 4 * (n & 1)) if SP else (lambda n, qb: vP[n & 1] + 4 * qb)
    NV = 256

    for l in """Kernarg: 0 q, 8 k, 16 v, 24 out, 32 debug, 40 ws.  One workgroup (8 waves x 32 q rows) per (batch, q head).
S^T = K.Q^T and O^T = V^T.P^T with v_mfma_f32_16x16x32_bf16; K/V tiles (64 keys) stream into two LDS rings by LDS-DMA
(XOR-swizzled images, V read with ds_read_b64_tr_b16).  Waves 0-3 lead, waves 4-7 lag by two tiles and load for them meanwhile.
Softmax: p = exp2(c*s - c*m), c = log2(e)/sqrt(D) (folded into Q, and -c*m into the MFMA C input, after the first 64 keys);
row sums by a ones-row (S)MFMA over the bf16 p.  m starts as the exact row max of the first 32 keys (so the row sum is >= 1 and nothing
underflows that the true max would keep).  Run-time check at the end: if any row sum exceeds 2^40 or is not finite, that
stand-in was unsafe and the whole workgroup recomputes with the true row max over all keys (L_redo).""".split("\n"):
        g.L.append("; " + l)
    g.L.append(f"; @launch grid=(256,1,1) block=(512,1,1) lds={lds_bytes}")
    g.L.append('.amdgcn_target "amdgcn-amd-amdhsa--gfx950"')
    g.L.append(".text"); g.L.append(f".globl {KNAME}"); g.L.append(".p2align 8"); g.L.append(f".type {KNAME},@function")
    g.lab(KNAME)
    e("s_load_dwordx4 s[4:7], s[0:1], 0")
    e("s_load_dwordx4 s[32:35], s[0:1], 16")
    g.stamp()
    if opt.stamps: e("s_memrealtime s[46:47]"); e("s_load_dwordx2 s[44:45], s[0:1], 40")
    e("s_cmp_ge_u32 s2, 256")
    e("s_cbranch_scc1 L_end")
    e(f"v_lshrrev_b32 v{t0}, 6, v0")
    e(f"v_and_b32 v{vLANE}, 63, v0")
    e(f"v_readfirstlane_b32 s{sWID}, v{t0}")
    e("s_and_b32 s36, s2, 7")
    e("s_lshr_b32 s37, s2, 3")
    e("s_lshl_b32 s38, s36, 5")
    e("s_add_u32 s38, s38, s37")
    e(f"s_lshl_b32 s{sQOFF}, s38, 16")
    e("s_lshl_b32 s38, s36, 3")
    e("s_lshr_b32 s37, s37, 2")
    e("s_add_u32 s38, s38, s37")
    e(f"s_lshl_b32 s{sKVOFF}, s38, 17")
    e(f"s_mov_b32 s{sREDO}, 0")
    e(f"s_mov_b32 s{sC}, 0x{f32bits(C_SCALE):08x}")
    e(f"s_lshl_b32 s36, s{sWID}, 13")
    e(f"s_add_u32 s{sQOFF}, s{sQOFF}, s36")
    e(f"s_and_b32 s36, s{sWID}, 3")
    e(f"s_lshl_b32 s{sW4K}, s36, 12")
    e(f"s_lshr_b32 s{sISB}, s{sWID}, 2")
    e(f"s_lshl_b32 s{sSTG}, s36, 13")
    if R == 5:
        e(f"s_mul_i32 s{sTMP}, s{sISB}, {VBASE}")
        e(f"s_add_u32 s{sSTG}, s{sSTG}, s{sTMP}")
        e(f"s_add_u32 s{sSTG}, s{sSTG}, {3*16384}")
    else:
        e(f"s_add_u32 s{sSTG}, s{sSTG}, {STG}")
    def srd(d, p, n):
        e(f"s_mov_b32 s{d}, s{p}"); e(f"s_and_b32 s{d+1}, s{p+1}, 0xffff"); e(f"s_mov_b32 s{d+2}, {n}"); e(f"s_mov_b32 s{d+3}, 0x20000")
    g.lab("L_restart")
    e(f"v_lshrrev_b32 v{t0}, 4, v{vLANE}")
    e(f"v_and_b32 v{t1}, 15, v{vLANE}")
    e(f"v_xor_b32 v{t2}, v{t0}, v{t1}")
    e(f"v_lshlrev_b32 v{vDV}, 8, v{t0}")
    e(f"v_lshl_add_u32 v{vDK}, v{t2}, 4, v{vDV}")
    for p in range(1, 4): e(f"v_xor_b32 v{vDK+p}, {64*p}, v{vDK}")
    e(f"v_lshlrev_b32 v{t2}, 1, v{t0}")
    e(f"v_xor_b32 v{t2}, v{t2}, v{t1}")
    e(f"v_lshl_add_u32 v{vDV}, v{t2}, 4, v{vDV}")
    e(f"v_xor_b32 v{vDV+1}, 128, v{vDV}")
    e(f"s_add_u32 s{sKV}, s{sKVOFF}, s{sW4K}")
    e(f"s_mov_b32 s{sFLAG}, 0")
    e("s_waitcnt lgkmcnt(0)")
    srd(sKSRD, 6, 8388608)
    def dma_items(x):
        out = []
        if x == "CP":
            out += ["s_getpc_b64 s[42:43]", f"s_add_u32 s42, s42, s{sW4K}", "s_addc_u32 s43, s43, 0", f"v_lshlrev_b32 v{t0}, 6, v{vLANE}",
                    f"v_mov_b32 v{vO+1}, s43", f"v_add_co_u32 v{vO}, vcc, s42, v{t0}", "s_nop 1", f"v_addc_co_u32 v{vO+1}, vcc, 0, v{vO+1}, vcc"]
            out.append((f"global_load_dword v{vO+2}, v[{vO}:{vO+1}], off", x))
            return out
        if x[0] == "P":
            kind, t = x[1], int(x[2:])
            srdn = sKSRD if kind == "K" else sVSRD
            out.append(f"s_add_u32 s{sTMP}, s{sPF}, {t*16384}")
            out.append((f"buffer_load_dword v{vPFD}, v{vPF}, s[{srdn}:{srdn+3}], s{sTMP} offen", x))
            return out
        if x == "TQ":
            out.append(f"v_lshlrev_b32 v{t0}, 7, v{vLANE}")
            out.append((f"buffer_load_dword v{t1}, v{t0}, s[{sQSRD}:{sQSRD+3}], s{sQOFF} offen", x))
            return out
        if x[0] == "Q":
            half = 0 if x == "Qa" else 1
            out += [f"s_add_u32 m0, s{sSTG}, {4096*half}", f"s_add_u32 s{sTMP}, s{sQOFF}, {4096*half}"]
            for i in range(4):
                out.append((f"buffer_load_dwordx4 v{vDK+i}, s[{sQSRD}:{sQSRD+3}], s{sTMP} offen offset:{1024*i} {qflag} lds", x))
            return out
        kind, p = x[0], int(x[1:])
        base = (KBASE if kind == "K" else VBASE) + (p % R) * 16384
        srdn = sKSRD if kind == "K" else sVSRD
        out += [f"s_add_u32 m0, s{sW4K}, {base}", f"s_add_u32 s{sTMP}, s{sKV}, {p*16384}"]
        for i in range(4):
            va = vDK + i if kind == "K" else vDV + (i & 1)
            out.append((f"buffer_load_dwordx4 v{va}, s[{srdn}:{srdn+3}], s{sTMP} offen offset:{1024*i} {ldflag} lds", x))
        return out
    def emit_items(lst):
        for y in lst:
            if isinstance(y, tuple): e(y[0]); g.vm_issue(y[1])
            else: e(y)
    def dma(x): emit_items(dma_items(x))
    def guarded(lst):
        l = g.newlab("L_nd")
        e(f"s_cmp_lg_u32 s{sISB}, 0"); e(f"s_cbranch_scc1 {l}")
        emit_items(lst)
        g.lab(l)
    def addrs():
        e(f"v_and_b32 v{t0}, 15, v{vLANE}")
        e(f"v_lshrrev_b32 v{t2}, 4, v{vLANE}")
        e(f"v_xor_b32 v{t1}, v{t0}, v{t2}")
        e(f"v_lshlrev_b32 v{t1}, 4, v{t1}")
        e(f"v_lshl_add_u32 v{vKA}, v{t0}, 8, v{t1}")
        for s in range(1, 4): e(f"v_xor_b32 v{vKA+s}, {64*s}, v{vKA}")
        e(f"v_lshrrev_b32 v{t0}, 2, v{vLANE}")
        e(f"v_and_b32 v{t1}, 7, v{t0}")
        e(f"v_lshlrev_b32 v{t1}, 5, v{t1}")
        e(f"v_lshl_add_u32 v{t1}, v{t0}, 8, v{t1}")
        e(f"v_and_b32 v{t0}, 3, v{vLANE}")
        e(f"v_lshl_add_u32 v{t1}, v{t0}, 3, v{t1}")
        e(f"v_add_u32 v{vVA}, {VBASE}, v{t1}")
        for db in range(1, 8): e(f"v_xor_b32 v{vVA+db}, {32*db}, v{vVA}")
        for s in range(4): e(f"v_add_u32 v{vV+s}, s{sSTG}, v{vKA+s}")
        for i in range(4): e(f"v_mov_b32 v{vONE+i}, 0x3f803f80")
        if SP:
            for i in range(8): e(f"v_mov_b32 v{vL+i}, 0")
            e(f"v_and_b32 v{t0}, 1, v{vLANE}"); e(f"v_mul_u32_u24 v{t0}, 0xaaaa, v{t0}"); e(f"v_add_u32 v{t0}, 0x4444, v{t0}")
            e(f"v_lshl_add_u32 v{vIDX}, v{t0}, 16, v{t0}")
        if R == 5: e(f"s_sub_u32 s{sOST}, s{sSTG}, s{sW4K}")
        else: e(f"s_lshl_b32 s{sOST}, s{sWID}, 12"); e(f"s_add_u32 s{sOST}, s{sOST}, {STG}")
        e(f"v_and_b32 v{t0}, 15, v{vLANE}")
        e(f"v_lshlrev_b32 v{t1}, 7, v{t0}")
        e(f"v_and_b32 v{vOW}, 1, v{t2}")
        e(f"v_lshl_add_u32 v{t1}, v{vOW}, 3, v{t1}")
        e(f"v_and_b32 v{t0}, 7, v{t0}")
        e(f"v_lshrrev_b32 v{vOW}, 1, v{t2}")
        e(f"v_xor_b32 v{t0}, v{t0}, v{vOW}")
        e(f"v_lshl_add_u32 v{t1}, v{t0}, 4, v{t1}")
        e(f"v_add_u32 v{vOW}, s{sOST}, v{t1}")
        e(f"v_lshlrev_b32 v{vOR}, 4, v{vLANE}")
        e(f"v_add_u32 v{vOR}, s{sOST}, v{vOR}")
        e(f"v_lshrrev_b32 v{t0}, 3, v{vLANE}")
        e(f"v_and_b32 v{t1}, 7, v{vLANE}")
        e(f"v_xor_b32 v{t1}, v{t1}, v{t0}")
        e(f"v_lshlrev_b32 v{t0}, 8, v{t0}")
        e(f"v_lshl_add_u32 v{vOS}, v{t1}, 4, v{t0}")
        if opt.mscale: selectors()
        if any(x[0] == "P" for x in when):
            e(f"s_bfe_u32 s{sPF}, s2, 0x20003"); e(f"s_lshl_b32 s{sPF}, s{sPF}, 12"); e(f"s_add_u32 s{sPF}, s{sPF}, s{sKVOFF}")
            e(f"s_lshl_b32 s{sTMP}, s{sW4K}, {2 - opt.pfh}"); e(f"s_add_u32 s{sPF}, s{sPF}, s{sTMP}") if opt.pfh == 0 else None
            if opt.pfh == 0: e(f"v_lshlrev_b32 v{vPF}, 6, v{vLANE}")
            else:
                e(f"v_and_b32 v{t0}, 7, v{vLANE}"); e(f"v_lshlrev_b32 v{t0}, 7, v{t0}"); e(f"v_lshrrev_b32 v{t1}, 3, v{vLANE}"); e(f"v_and_b32 v{t1}, 1, v{t1}")
                e(f"v_lshl_add_u32 v{vPF}, v{t1}, 14, v{t0}"); e(f"s_lshr_b32 s{sTMP}, s{sW4K}, 2"); e(f"s_add_u32 s{sPF}, s{sPF}, s{sTMP}")
    vSEL = vO + 32
    def bf16r(x):
        u = f32bits(x); return (u + 0x7fff + ((u >> 16) & 1)) >> 16
    c_hi = bf16r(C_SCALE); c_lo = bf16r(C_SCALE - struct.unpack("<f", struct.pack("<I", c_hi << 16))[0])
    def selectors():
        e(f"v_bfe_u32 v{t0}, v{vLANE}, 2, 2"); e(f"v_lshrrev_b32 v{t1}, 4, v{vLANE}")
        e(f"v_cmp_eq_u32 vcc, v{t0}, v{t1}")
        e(f"v_and_b32 v{t0}, 1, v{vLANE}"); e(f"v_lshlrev_b32 v{t0}, 4, v{t0}")
        e(f"v_and_b32 v{t1}, 2, v{vLANE}")
        e(f"v_cmp_eq_u32 s[42:43], 0, v{t1}")
        for k_, cv in enumerate((c_hi, c_lo)):
            b = vSEL + 6 * k_
            e(f"v_mov_b32 v{t2}, {cv}"); e(f"v_lshlrev_b32 v{t2}, v{t0}, v{t2}")
            e(f"v_cndmask_b32 v{t2}, 0, v{t2}, vcc")
            e(f"v_cndmask_b32 v{b+2}, 0, v{t2}, s[42:43]"); e(f"v_cndmask_b32 v{b+3}, v{t2}, 0, s[42:43]")
            for z in (0, 1, 4, 5): e(f"v_mov_b32 v{b+z}, 0")
    def qread():
        for qb in range(2):
            for s in range(4): e(f"ds_read_b128 v[{vQ+16*qb+4*s}:{vQ+16*qb+4*s+3}], v{vV+s} offset:{4096*qb}")
    needed_at = lambda j: {f"K{p}" for p in range(8) if needK(p) == j} | {f"V{p}" for p in range(8) if needV(p) == j}

    e(f"s_cmp_lg_u32 s{sISB}, 0")
    e("s_cbranch_scc1 L_proB")
    g.vm = []
    dma("K0"); srd(sQSRD, 4, 16777216); dma("Qa"); dma("Qb")
    e(f"s_mov_b32 s{sC1}, s{sC}")
    srd(sVSRD, 32, 8388608); srd(sOSRD, 34, 16777216)
    for x in schedA.get(-1, []): dma(x)
    addrs()
    if opt.prioA: e("s_setprio 1")
    g.vm_wait({"K0"})
    vmA = g.vm
    e("s_branch L_main")
    g.lab("L_proB")
    g.vm = []
    srd(sQSRD, 4, 16777216); srd(sVSRD, 32, 8388608); srd(sOSRD, 34, 16777216)
    addrs()
    for x in schedB.get(-1, []): dma(x)
    if opt.dry:
        e(f"s_mov_b32 s{sFLAG}, 1"); e("s_branch L_scale")
        g.lab("L_dry_ret")
        e(f"s_mov_b32 s{sFLAG}, 0")
    for j in range(NS):
        g.vm_wait(needed_at(j))
        e("s_barrier")
        for x in schedB.get(j, []): dma(x)
    if EQ:
        e(f"s_mov_b32 s{sC1}, 1.0")
        g.vm_wait({"Qa", "Qb"})
        qread()
        e("s_waitcnt lgkmcnt(0)")
        e("s_branch L_scale")
        g.lab("L_scale_ret")
    else:
        e(f"s_mov_b32 s{sC1}, s{sC}")
    g.vm_wait(needed_at(NS))
    vmB = g.vm
    g.lab("L_main")
    g.vm = vmA
    st = {"K": 0, "V": 0}
    def rebias(kind, t):
        want = 65536 if (t % R) == 4 else 0
        out = []
        if st[kind] != want:
            regs = [vKA + s for s in range(4)] if kind == "K" else [vVA + d for d in range(8)]
            out = [f"v_add_u32 v{r_}, {65536 if want else -65536 & 0xffffffff}, v{r_}" for r_ in regs]
            st[kind] = want
        return out
    def kread(n, f):
        t, blk = n >> 1, n & 1; kt, s = f >> 2, f & 3
        off = KBASE + (t % R) * 16384 + blk * 8192 + kt * 4096 - st['K']
        assert 0 <= off < 65536
        return f"ds_read_b128 v[{vK+4*f}:{vK+4*f+3}], v{vKA+s} offset:{off}"
    vreg = lambda n, db: (vK if (opt.tail2 and n == 15) else vV) + 4 * db
    def vread(n, db, h):
        t, blk = n >> 1, n & 1
        d = vreg(n, db) + 2 * h
        off = (t % R) * 16384 + (blk * 32 + 16 * h) * 256 - st['V']
        assert 0 <= off < 65536
        return f"ds_read_b64_tr_b16 v[{d}:{d+1}], v{vVA+db} offset:{off}"
    MF = "v_mfma_f32_16x16x32_bf16"
    def qk(n, m):
        kt, qb, s = m >> 3, (m >> 2) & 1, m & 3
        S = vS[n & 1] + 8 * qb + 4 * kt
        cin = f"v[{S}:{S+3}]" if s else (f"v[{vNM+4*qb}:{vNM+4*qb+3}]" if n >= 2 else "0")
        a = vK + 16 * kt + 4 * s; b = vQ + 16 * qb + 4 * s
        return f"{MF} v[{S}:{S+3}], v[{a}:{a+3}], v[{b}:{b+3}], {cin}"
    def pv(n, db, qb):
        O = vO + 8 * db + 4 * qb; P = Preg(n, qb); a = vreg(n, db)
        cin = "0" if n == 0 else f"v[{O}:{O+3}]"
        return f"{MF} v[{O}:{O+3}], v[{a}:{a+3}], v[{P}:{P+3}], {cin}"
    def rsum(n, qb):
        L = vL + 4 * qb; P = Preg(n, qb)
        cin = "0" if n == 0 else f"v[{L}:{L+3}]"
        return f"{MF} v[{L}:{L+3}], v[{vONE}:{vONE+3}], v[{P}:{P+3}], {cin}"
    def pre(n, i): return f"v_fma_f32 v{vS[n&1]+i}, v{vS[n&1]+i}, s{sC1}, v{vNM+4*(i>>3)}" if n < 2 else None
    def exp(n, i): return f"v_exp_f32 v{vS[n&1]+i}, v{vS[n&1]+i}"
    def rs64(qb):
        L = vL + 4 * qb; P = vP[0] + 8 * qb
        return f"v_smfmac_f32_16x16x64_bf16 v[{L}:{L+3}], v[{vONE}:{vONE+3}], v[{P}:{P+7}], v{vIDX}"
    def cvt(n, k): return f"v_cvt_pk_bf16_f32 v{Preg(n, k >> 2) + (k & 3)}, v{vS[n&1]+2*k}, v{vS[n&1]+2*k+1}"
    def scaleq(r_):
        return [f"v_lshlrev_b32 v{t0}, 16, v{r_}", f"v_and_b32 v{t1}, 0xffff0000, v{r_}",
                f"v_mul_f32 v{t0}, s{sC}, v{t0}", f"v_mul_f32 v{t1}, s{sC}, v{t1}", f"v_cvt_pk_bf16_f32 v{r_}, v{t0}, v{t1}"]
    def both_wait(t):
        n = 63
        for vm, j in ((vmA, t), (vmB, t + NS)):
            idx = [i for i, x in enumerate(vm) if x in needed_at(j)]
            if idx: n = min(n, len(vm) - 1 - max(idx))
        return [f"s_waitcnt vmcnt({n})"] if n < 63 else []
    def rowmax(dst, srcs, u):
        out = []
        out.append(f"v_max3_f32 v{dst}, v{srcs[0]}, v{srcs[1]}, v{srcs[2]}")
        out.append(f"v_max3_f32 v{u}, v{srcs[3]}, v{srcs[4]}, v{srcs[5]}")
        out.append(f"v_max3_f32 v{dst}, v{dst}, v{srcs[6]}, v{srcs[7]}")
        out.append(f"v_max_f32 v{dst}, v{dst}, v{u}")
        return out
    def xlane(regs, us):
        for op in ("v_permlane32_swap_b32", "v_permlane16_swap_b32"):
            for r_, u in zip(regs, us): e(f"v_mov_b32 v{u}, v{r_}")
            e("s_nop 1")
            for r_, u in zip(regs, us): e(f"{op} v{r_}, v{u}")
            for r_, u in zip(regs, us): e(f"v_max_f32 v{r_}, v{r_}, v{u}")

    g.stamp()
    e("s_barrier")
    g.stamp()
    for f in range(8): e(kread(0, f))
    e(f"s_cmp_lg_u32 s{sISB}, 0"); e("s_cbranch_scc1 L_bq")
    g.vm_wait({"Qb"})
    if EQ: qread()
    e("s_branch L_haveq")
    g.lab("L_bq")
    g.vm = vmB
    for x in schedB.get(NS, []): dma(x)
    if not EQ: g.vm_wait({"Qa", "Qb"})
    g.vm = vmA
    g.lab("L_haveq")
    if not EQ: qread()
    e("s_waitcnt lgkmcnt(0)")
    g.stamp()
    if opt.prio0: e("s_setprio 1")
    S0 = vS[0]
    for m in range(16):
        e(qk(0, m))
        if (m >> 2) & 1: e(kread(1, 4 * (m >> 3) + (m & 3)))
    e("s_waitcnt lgkmcnt(4)")
    for m in range(4): e(qk(1, m))
    e("s_nop 3")
    e(f"s_cmp_lg_u32 s{sREDO}, 0")
    e("s_cbranch_scc1 L_have_m")
    u = vV + 8
    a_ = rowmax(vNM, [S0 + i for i in range(8)], u); b_ = rowmax(vNM + 4, [S0 + 8 + i for i in range(8)], u + 1)
    for x, y in zip(a_, b_): e(x); e(y)
    xlane([vNM, vNM + 4], [u, u + 1])
    e(f"v_mul_f32 v{vNM}, s{sC1}, v{vNM}"); e(f"v_mul_f32 v{vNM+4}, s{sC1}, v{vNM+4}")
    e(f"v_sub_f32 v{vNM}, 0, v{vNM}"); e(f"v_sub_f32 v{vNM+4}, 0, v{vNM+4}")
    g.lab("L_have_m")
    e(pre(0, 0))
    mf = [qk(1, m) for m in range(4, 16)]
    for i in range(10):
        if i == 2: e("s_waitcnt lgkmcnt(0)")
        if mf: e(mf.pop(0))
        e(pre(0, i + 1)); e(exp(0, i))
        if i % 2 == 0 and i >= 2: e(cvt(0, i // 2 - 1))
        if i >= 8 and mf: e(mf.pop(0))
    assert not mf
    if opt.bearly:
        assert not EQ
        e(f"s_cmp_lg_u32 s{sISB}, 0"); e("s_cbranch_scc1 L_scale")
        g.lab("L_scale_ret")
    for x in both_wait(1): e(x)
    e("s_barrier")
    if schedB.get(NS + 1):
        e(f"s_cmp_eq_u32 s{sISB}, 0"); e("s_cbranch_scc1 L_noB1")
        g.vm = vmB
        for x in schedB[NS + 1]: dma(x)
        g.vm = vmA
        g.lab("L_noB1")
    if opt.mscale:
        assert not (EQ or opt.bearly or opt.dry)
        rd0 = [kread(2, f) for f in range(8)] + [vread(0, db, h) for db in range(8) for h in range(2)][:11]
        va = []
        for i in range(10, 16):
            va.append([pre(0, i + 1) if i < 15 else pre(1, 0)]); va.append([exp(0, i)])
            if i % 2 == 0: va.append([cvt(0, i // 2 - 1)])
        va += [[f"v_mov_b32 v{vNM+4*qb+i}, v{vNM+4*qb}"] for qb in range(2) for i in range(1, 4)]
        def sm(f, k_):
            D = vO + 8 * (f & 1) + 4 * (k_ >> 1); a = vSEL + 6 * (k_ & 1) + (2 if k_ < 2 else 0); b = vQ + 4 * f
            return f"{MF} v[{D}:{D+3}], v[{a}:{a+3}], v[{b}:{b+3}], " + ("0" if k_ % 2 == 0 else f"v[{D}:{D+3}]")
        def sc(f, j): D = vO + 8 * (f & 1); return f"v_cvt_pk_bf16_f32 v{vQ+4*f+j}, v{D+2*j}, v{D+2*j+1}"
        for f in range(9):
            for k_ in range(4):
                if f < 8: e(sm(f, k_))
                elif k_ == 0: e("s_nop 3")
                fl = []
                if f >= 1 and k_ >= 2: fl += [sc(f - 1, 2 * (k_ - 2)), sc(f - 1, 2 * (k_ - 2) + 1)]
                elif f < 8:
                    if rd0: fl.append(rd0.pop(0))
                    if rd0 and k_ == 0 and f < 3: fl.append(rd0.pop(0))
                    elif va: fl += va.pop(0)
                    if f == 0 and va: fl += va.pop(0)
                for x in fl: e(x)
        for x in rd0: e(x)
        for y in va:
            for x in y: e(x)
    else:
        rd0 = [kread(2, f) for f in range(8)] + [vread(0, db, h) for db in range(8) for h in range(2)][:11]
        for i in range(10, 16):
            for _ in range(4):
                if rd0: e(rd0.pop(0))
            e(pre(0, i + 1) if i < 15 else pre(1, 0)); e(exp(0, i))
            if i % 2 == 0: e(cvt(0, i // 2 - 1))
        for qb in range(2):
            for i in range(1, 4): e(f"v_mov_b32 v{vNM+4*qb+i}, v{vNM+4*qb}")
        if opt.bearly or EQ: e(f"s_cmp_lg_u32 s{sISB}, 0"); e("s_cbranch_scc1 L_scale_done")
        g.lab("L_scale")
        for r_ in range(vQ, vQ + 32):
            for x in scaleq(r_): e(x)
        if opt.bearly or EQ:
            e(f"s_cmp_lg_u32 s{sISB}, 0"); e("s_cbranch_scc1 L_scale_ret")
            g.lab("L_scale_done")
        if opt.dry: e(f"s_cmp_lg_u32 s{sFLAG}, 0"); e("s_cbranch_scc1 L_dry_ret")
    if opt.prio0: e("s_setprio 0")
    g.stamp()
    plan = {0: [("Vp", 5, 1)], 1: [("Vp", 6, 0), ("Vp", 6, 1)], 2: [("Vp", 7, 0)], 3: [("Vp", 7, 1), ("K", 0)], 4: [("K", 1)],
            5: [("K", 2), ("K", 3)], 6: [("K", 4)], 7: [("K", 5), ("K", 6)], 8: [("K", 7)], 9: [("V", 0, 0), ("V", 0, 1)],
            10: [("V", 1, 0)], 11: [("V", 1, 1), ("V", 2, 0)], 12: [("V", 2, 1)], 13: [("V", 3, 0), ("V", 3, 1)], 14: [("V", 4, 0)], 15: [("V", 4, 1), ("V", 5, 0)]}
    ea = [f"v_mov_b32 v{vKA}, v{vOW}"] + [f"v_xor_b32 v{vKA+j}, {32*j}, v{vOW}" for j in range(1, 4)] + [f"s_add_u32 s{sT2}, s{sQOFF}, 4096", f"s_mov_b32 s{sTMP}, 0x{f32bits(2.0**40):08x}"]
    plan0 = plan
    planT = {0: [("Vp", 5, 1)], 1: [("Vp", 6, 0), ("Vp", 6, 1)], 2: [("Vp", 7, 0), ("Vp", 7, 1)], 3: [], 4: [("K", 0)], 5: [("K", 1), ("K", 2)],
             6: [("K", 3)], 7: [("K", 4), ("K", 5)], 8: [("K", 6)], 9: [("K", 7), ("V", 0, 0)], 10: [("V", 0, 1)], 11: [("V", 1, 0), ("V", 1, 1)],
             12: [("V", 2, 0)], 13: [("V", 2, 1), ("V", 3, 0)], 14: [("V", 3, 1)], 15: [("V", 4, 0), ("V", 4, 1), ("V", 5, 0)]}
    pend = []
    for n in range(1, 15):
        hasbar = (n % 2 == 0)
        tight = TIGHT and hasbar
        plan = planT if tight else plan0
        if n == 14 and opt.tail2:
            assert tight
            plan = dict(planT)
            plan.update({4: [("W", 0, 0)], 5: [("W", 0, 1), ("W", 1, 0)], 6: [("W", 1, 1)], 7: [("W", 2, 0), ("W", 2, 1)],
                         8: [("W", 3, 0)], 9: [("W", 3, 1), ("V", 0, 0)]})
        BP = 4 if tight else 3
        if n == opt.prioslot: e("s_setprio 2")
        e("s_waitcnt lgkmcnt(11)")
        for pr in range(16):
            if pr == 8:
                if not SP: e(rsum(n - 1, 0))
                elif n % 2 == 0: e(rs64(1))
                e(f"s_waitcnt lgkmcnt({(6 if tight else 7) if (n < 14 or opt.tail2) else 0})")
            m0_, m1_ = (qk(n + 1, 2 * pr), qk(n + 1, 2 * pr + 1)) if pr < 8 else (pv(n - 1, pr - 8, 0), pv(n - 1, pr - 8, 1))
            def mid():
                if pr == BP:
                    if hasbar:
                        t = n // 2 + 1
                        lg = ["s_waitcnt lgkmcnt(0)"] if tight else []
                        bw = both_wait(t)
                        blk = ([bw[0] + " lgkmcnt(0)"] if (bw and lg) else bw + lg) + ["s_barrier"]
                        if t >= 9 - NS:
                            idx = [i for i, x in enumerate(vmA) if x in needed_at(t)]
                            guarded([f"s_waitcnt vmcnt({len(vmA) - 1 - max(idx)})" + (" lgkmcnt(0)" if lg else ""), "s_barrier"])
                        else:
                            for x in blk: e(x)
                        for x in schedA.get(t, []):
                            it = dma_items(x)
                            if opt.dblk == 1:
                                pend.append(it[:3])
                                for y in it[3:]: pend.append([y])
                            elif opt.dblk == 2: pend.append(it[:4]); pend.append(it[4:])
                            elif opt.dblk == 4 or not pend: pend.append(it)
                            else: pend[-1] = pend[-1] + it
                    if n < 14:
                        for x in rebias("K", (n + 2) >> 1): e(x)
                if pr == 9:
                    for x in rebias("V", n >> 1): e(x)
            def fill(prr, nn):
                for r_ in plan[prr]:
                    if r_[0] == "K":
                        if nn < 14: e(kread(nn + 2, r_[1]))
                    elif r_[0] == "W": e(vread(15, r_[1], r_[2]))
                    elif r_[0] == "E": e(ea.pop(0))
                    elif r_[0] == "Vp": e(vread(nn - 1, r_[1], r_[2]))
                    else: e(vread(nn, r_[1], r_[2]))
                if n == 1 and pr < 15: e(pre(1, pr + 1))
                if tight and pr in (2, 4): pass
                elif tight and pr == 3: e(cvt(n, 0)); e(cvt(n, 1))
                elif pr % 2 == 0: e(cvt(n, pr // 2 - 1) if pr else cvt(n - 1, 7))
            e(m0_)
            e(exp(n, pr))
            e(m1_)
            mid()
            fill(pr, n)
            if opt.stag:
                if pend and pr >= BP and (pr - BP) % opt.stag == 0 and (pr - BP) // opt.stag < 4:
                    k_ = (pr - BP) // opt.stag
                    l_ = g.newlab("L_sg")
                    e(f"s_cmp_lg_u32 s{sWID}, {k_}"); e(f"s_cbranch_scc1 {l_}")
                    keep = list(g.vm)
                    for blk in pend: emit_items(blk)
                    if k_ < 3: g.vm[:] = keep
                    else: pend = []
                    g.lab(l_)
            elif pend and pr >= opt.dstart and pr % opt.spread == opt.spread - 1: guarded(pend.pop(0))
        if not SP: e(rsum(n - 1, 1))
        elif n % 2 == 1: e(rs64(0))
        if n % 2 == 1 or n == 14:
            for blk in pend: guarded(blk)
            pend = []
        if n % 2 == 0: g.stamp()
    if opt.tail2:
        lq = [(14, db, h) for db in range(6) for h in range(2)][:11]
        todo = [(14, 5, 1), (14, 6, 0), (14, 6, 1), (14, 7, 0), (14, 7, 1)] + [(15, db, h) for db in range(4, 8) for h in range(2)]
        def lwait(tags): e(f"s_waitcnt lgkmcnt({len(lq) - 1 - max(lq.index(x) for x in tags)})")
        for db in range(8):
            if db in (0, 2, 5): lwait([(14, d, h) for d in {0: (0, 1), 2: (2, 3, 4), 5: (5, 6, 7)}[db] for h in range(2)])
            e(pv(14, db, 0))
            if db == 0: e(cvt(14, 7))
            e(exp(15, 2 * db))
            if db == 0: e(ea.pop(0))
            e(pv(14, db, 1)); e(exp(15, 2 * db + 1))
            for _ in range(2):
                if todo: x = todo.pop(0); e(vread(*x)); lq.append(x)
            if db: e(cvt(15, db - 1))
            if db == 6: e(rs64(0))
            if ea and db >= 1: e(ea.pop(0))
        assert not todo and not ea and SP and opt.qtail
    else:
        e(cvt(14, 7))
        for x in [vread(14, 5, 1), vread(14, 6, 0), vread(14, 6, 1), vread(14, 7, 0), vread(14, 7, 1)]: e(x)
        e("s_waitcnt lgkmcnt(5)")
        for db in range(8):
            if db == 5: e("s_waitcnt lgkmcnt(10)")
            e(pv(14, db, 0)); e(exp(15, 2 * db))
            e(pv(14, db, 1)); e(exp(15, 2 * db + 1))
            e(vread(15, db, 0)); e(vread(15, db, 1))
            if db: e(cvt(15, db - 1))
            if db == 0 and not SP: e(rsum(14, 0))
            if db == 4 and not SP: e(rsum(14, 1))
            if db == 6 and SP: e(rs64(0))
            if ea and db >= 2: e(ea.pop(0))
    e(cvt(15, 7))
    g.stamp()
    rc = [t1, t2]
    if opt.pkmul: rc = [vONE, vONE + 2]
    def muls(db):
        if opt.pkmul:
            return [f"v_pk_mul_f32 v[{vO+8*db+4*qb+r_}:{vO+8*db+4*qb+r_+1}], v[{vO+8*db+4*qb+r_}:{vO+8*db+4*qb+r_+1}], v[{rc[qb]}:{rc[qb]+1}] op_sel_hi:[1,0]" for qb in range(2) for r_ in (0, 2)]
        return [f"v_mul_f32 v{vO+8*db+4*qb+r_}, v{rc[qb]}, v{vO+8*db+4*qb+r_}" for qb in range(2) for r_ in range(4)]
    def pack(db, Rr):
        out = []
        for qb in range(2):
            O = vO + 8 * db + 4 * qb
            out += [f"v_cvt_pk_bf16_f32 v{Rr+2*qb}, v{O}, v{O+1}", f"v_cvt_pk_bf16_f32 v{Rr+2*qb+1}, v{O+2}, v{O+3}",
                    f"ds_write_b64 v{vKA+(db&3)}, v[{Rr+2*qb}:{Rr+2*qb+1}] offset:{2048*qb}"]
        return out
    def rd(D): return [f"ds_read_b128 v[{D+4*i}:{D+4*i+3}], v{vOR} offset:{1024*i}" for i in range(4)]
    def stv(h, i, D): return f"buffer_store_dwordx4 v[{D+4*i}:{D+4*i+3}], v{vOS}, s[{sOSRD}:{sOSRD+3}], s{sQOFF if i < 2 else sT2} offen offset:{128*h+2048*(i&1)} {stflag}"
    if opt.qtail:
        assert SP and not opt.pkmul
        def nrm(db, qb):
            O = vO + 8 * db + 4 * qb; Rr = (vV if opt.tail2 else vK) + 4 * db + 2 * qb
            return [f"v_mul_f32 v{O+r_}, v{rc[qb]}, v{O+r_}" for r_ in range(4)] + [f"v_cvt_pk_bf16_f32 v{Rr}, v{O}, v{O+1}", f"v_cvt_pk_bf16_f32 v{Rr+1}, v{O+2}, v{O+3}",
                    f"ds_write_b64 v{vKA+(db&3)}, v[{Rr}:{Rr+1}] offset:{2048*qb}"]
        Dq = lambda qb, h: vS[0] + 16 * h + 8 * qb
        def rdq(qb, h): return [f"ds_read_b128 v[{Dq(qb,h)+4*i}:{Dq(qb,h)+4*i+3}], v{vOR} offset:{2048*qb+1024*i}" for i in range(2)]
        def stq(qb, h, i): return f"buffer_store_dwordx4 v[{Dq(qb,h)+4*i}:{Dq(qb,h)+4*i+3}], v{vOS}, s[{sOSRD}:{sOSRD+3}], s{sQOFF if qb == 0 else sT2} offen offset:{128*h+2048*i} {stflag}"
        e("s_nop 0" if opt.tail2 else "s_waitcnt lgkmcnt(8)")
        e(pv(15, 0, 0)); e(f"v_add_f32 v{vL}, v{vL}, v{vL+1}")
        e(rs64(1))
        e(pv(15, 1, 0)); e(f"v_rcp_f32 v{rc[0]}, v{vL}")
        e(pv(15, 2, 0)); e(f"v_cmp_nge_f32 vcc, s{sTMP}, v{vL}")
        e(pv(15, 3, 0)); e("s_waitcnt lgkmcnt(0)")
        w0 = nrm(0, 0)
        for db in range(4, 8):
            e(pv(15, db, 0))
            if db >= 5: e(w0.pop(0)); e(w0.pop(0))
        e(f"v_add_f32 v{vL+4}, v{vL+4}, v{vL+5}")
        fl = w0 + [f"v_rcp_f32 v{rc[1]}, v{vL+4}"] + nrm(1, 0) + [f"v_cmp_nge_f32 s[42:43], s{sTMP}, v{vL+4}"] + nrm(2, 0) + nrm(3, 0) + rdq(0, 0) + nrm(4, 0) + nrm(5, 0)
        for db in range(8):
            e(pv(15, db, 1))
            for _ in range(opt.qfill):
                if fl: e(fl.pop(0))
        for x in fl: e(x)
        e("s_or_b64 vcc, vcc, s[42:43]")
        e(f"s_cselect_b32 s{sFLAG}, 1, 0")
        e("s_waitcnt lgkmcnt(2)")
        e(stq(0, 0, 0))
        for x in nrm(6, 0): e(x)
        e(stq(0, 0, 1))
        for x in nrm(7, 0) + rdq(0, 1) + nrm(0, 1) + nrm(1, 1): e(x)
        e("s_waitcnt lgkmcnt(2)")
        e(stq(0, 1, 0))
        for x in nrm(2, 1): e(x)
        e(stq(0, 1, 1))
        for x in nrm(3, 1) + rdq(1, 0) + nrm(4, 1) + nrm(5, 1): e(x)
        e("s_waitcnt lgkmcnt(2)")
        e(stq(1, 0, 0))
        for x in nrm(6, 1): e(x)
        e(stq(1, 0, 1))
        for x in nrm(7, 1) + rdq(1, 1): e(x)
        e("s_waitcnt lgkmcnt(1)"); e(stq(1, 1, 0))
        e("s_waitcnt lgkmcnt(0)"); e(stq(1, 1, 1))
    else:
        if SP:
            e("s_waitcnt lgkmcnt(8)")
            e(pv(15, 0, 0)); e(rs64(1)); e(pv(15, 0, 1))
            for db in range(1, 4): e(pv(15, db, 0)); e(pv(15, db, 1))
            e("s_waitcnt lgkmcnt(0)")
            e(f"v_add_f32 v{vL}, v{vL}, v{vL+1}"); e(f"v_add_f32 v{vL+4}, v{vL+4}, v{vL+5}")
        else:
            e(rsum(15, 0))
            e("s_waitcnt lgkmcnt(8)")
            e(rsum(15, 1))
            for db in range(4): e(pv(15, db, 0)); e(pv(15, db, 1))
            e("s_waitcnt lgkmcnt(0)")
        e(f"v_rcp_f32 v{rc[0]}, v{vL}"); e(pv(15, 4, 0))
        e(f"v_rcp_f32 v{rc[1]}, v{vL+4}"); e(pv(15, 4, 1))
        e(f"v_cmp_nge_f32 vcc, s{sTMP}, v{vL}")
        e(f"v_cmp_nge_f32 s[42:43], s{sTMP}, v{vL+4}")
        ms = [pv(15, db, qb) for db in range(5, 8) for qb in range(2)]
        if opt.pkmul:
            for x in ms: e(x)
            ms = []
            e("s_setprio 3")
            for db in range(8):
                if db == 5: e("s_nop 0")
                for x in muls(db): e(x)
            e(f"s_setprio {opt.epiprio}")
            muls = lambda db: []
        elif opt.epiprio: e(f"s_setprio {opt.epiprio}")
        first = muls(0) + pack(0, vK) + muls(1) + pack(1, vK + 4)
        for k_, x in enumerate(first):
            if k_ % (2 if opt.pkmul else 3) == 0 and ms: e(ms.pop(0))
            e(x)
        assert not ms
        if opt.prioA or opt.prioslot: e("s_setprio 0")
        e("s_or_b64 vcc, vcc, s[42:43]")
        e(f"s_cselect_b32 s{sFLAG}, 1, 0")
        for db in (2, 3):
            for x in muls(db) + pack(db, vK + 4 * db): e(x)
        for x in rd(vS[0]): e(x)
        for x in muls(4) + pack(4, vK + 16) + muls(5): e(x)
        e("s_waitcnt lgkmcnt(2)")
        rest = pack(5, vK + 20) + muls(6) + pack(6, vK + 24) + muls(7)
        q4 = len(rest) // 4
        for i in range(4):
            e(stv(0, i, vS[0]))
            for x in rest[i * q4:(i + 1) * q4 if i < 3 else None]: e(x)
        for x in pack(7, vK + 28): e(x)
        for x in rd(vS[1]): e(x)
        for i in range(4):
            e(f"s_waitcnt lgkmcnt({3-i})"); e(stv(1, i, vS[1]))
    g.stamp()
    if opt.drainstamp: e("s_waitcnt vmcnt(0)"); g.stamp()
    e(f"s_lshl_b32 s{sT2}, s{sWID}, 2")
    e(f"s_add_u32 s{sT2}, s{sT2}, {FLAG_OFF}")
    e(f"v_mov_b32 v{t0}, s{sT2}")
    e(f"v_mov_b32 v{t1}, s{sFLAG}")
    e(f"ds_write_b32 v{t0}, v{t1}")
    e("s_waitcnt lgkmcnt(0)")
    e("s_barrier")
    e(f"v_and_b32 v{t0}, 7, v{vLANE}")
    e(f"v_lshlrev_b32 v{t0}, 2, v{t0}")
    e(f"v_add_u32 v{t0}, {FLAG_OFF}, v{t0}")
    e(f"ds_read_b32 v{t1}, v{t0}")
    e("s_waitcnt lgkmcnt(0)")
    e(f"v_cmp_ne_u32 vcc, 0, v{t1}")
    e(f"s_cmp_lg_u32 s{sREDO}, 0")
    e("s_cbranch_scc1 L_fin")
    e("s_cbranch_vccnz L_redo")
    g.lab("L_fin")
    if opt.stamps:
        e("s_waitcnt vmcnt(0)")
        g.stamp()
        e("s_memrealtime s[48:49]")
        e("s_waitcnt lgkmcnt(0)")
        e(f"s_lshl_b32 s36, s2, 3"); e(f"s_add_u32 s36, s36, s{sWID}"); e("s_lshl_b32 s36, s36, 7")
        e("v_mov_b32 v4, s36")
        e(f"v_cmp_eq_u32 vcc, 0, v{vLANE}"); e("s_and_saveexec_b64 s[42:43], vcc")
        e("v_mov_b32 v6, s46"); e("global_store_dword v4, v6, s[44:45] offset:0")
        e("v_mov_b32 v6, s48"); e("global_store_dword v4, v6, s[44:45] offset:4")
        for i in range(1, g.nstamp):
            if opt.both:
                e(f"s_sub_u32 s36, s{50+4*i}, s50"); e("v_mov_b32 v6, s36"); e(f"global_store_dword v4, v6, s[44:45] offset:{4+4*i}")
                e(f"s_sub_u32 s36, s{52+4*i}, s52"); e("v_mov_b32 v6, s36"); e(f"global_store_dword v4, v6, s[44:45] offset:{64+4*i}")
            else:
                e(f"s_sub_u32 s36, s{50+2*i}, s50"); e("v_mov_b32 v6, s36"); e(f"global_store_dword v4, v6, s[44:45] offset:{4+4*i}")
        e("s_waitcnt vmcnt(0)")
    g.lab("L_end")
    e("s_endpgm")
    g.lab("L_redo")
    e("s_barrier")
    e(f"s_mov_b32 s{sREDO}, 1")
    e(f"v_and_b32 v{t0}, 15, v{vLANE}"); e(f"v_lshrrev_b32 v{t1}, 4, v{vLANE}")
    e(f"v_lshlrev_b32 v{t0}, 8, v{t0}"); e(f"v_lshl_add_u32 v{t0}, v{t1}, 4, v{t0}")
    e(f"v_add_u32 v{t2}, 4096, v{t0}")
    e(f"v_mov_b32 v{vNM}, 0xff800000"); e(f"v_mov_b32 v{vNM+4}, 0xff800000")
    e(f"s_mov_b32 s{sT2}, s{sKVOFF}")
    e(f"s_add_u32 s43, s{sKVOFF}, 131072")
    g.lab("L_redo_loop")
    e("s_waitcnt vmcnt(0)")
    for f in range(8):
        e(f"buffer_load_dwordx4 v[{vK+4*f}:{vK+4*f+3}], v{t2 if f >= 4 else t0}, s[{sKSRD}:{sKSRD+3}], s{sT2} offen offset:{64*(f&3)}")
    e("s_waitcnt vmcnt(0)")
    for m in range(16): e(qk(0, m))
    e("s_nop 15")
    for qb in range(2):
        for i in range(0, 8, 2): e(f"v_max3_f32 v{vNM+4*qb}, v{vNM+4*qb}, v{S0+8*qb+i}, v{S0+8*qb+i+1}")
    e(f"s_add_u32 s{sT2}, s{sT2}, 8192")
    e(f"s_cmp_lt_u32 s{sT2}, s43")
    e("s_cbranch_scc1 L_redo_loop")
    xlane([vNM, vNM + 4], [t0, t1])
    e(f"v_sub_f32 v{vNM}, 0, v{vNM}"); e(f"v_sub_f32 v{vNM+4}, 0, v{vNM+4}")
    e("s_branch L_restart")
    if "CP" in when: g.L.append(".fill 1024, 4, 0xbf800000")
    g.L.append('.section .rodata,"a"'); g.L.append(".p2align 6"); g.L.append(f".amdhsa_kernel {KNAME}")
    for l in [f".amdhsa_next_free_vgpr {NV}", ".amdhsa_next_free_sgpr 102", f".amdhsa_accum_offset {NV}", ".amdhsa_group_segment_fixed_size 0",
              ".amdhsa_kernarg_size 48", ".amdhsa_user_sgpr_count 2", ".amdhsa_user_sgpr_kernarg_segment_ptr 1", ".amdhsa_system_sgpr_workgroup_id_x 1"]:
        g.L.append("  " + l)
    g.L.append(".end_amdhsa_kernel")
    g.L.append(f"; nstamp={g.nstamp}")
    return "\n".join(g.L) + "\n"

if __name__ == "__main__":
    ap = argparse.ArgumentParser()
    ap.add_argument("-o", default="standalone__gqa_softmax__near_ridge.s")
    ap.add_argument("--schedB", default="-1:K1,V0,CP_0:K2,V1,TQ_1:Qa,Qb_2:K3,V2")
    ap.add_argument("--schedA", default="3:K4,V3_4:K5,V4_5:K6,V5_6:K7,V6_7:V7")
    ap.add_argument("--dblk", type=int, default=4)
    ap.add_argument("--dstart", type=int, default=0)
    ap.add_argument("--prio0", action="store_true")
    ap.add_argument("--codepf", action="store_true")
    ap.add_argument("--dry", action="store_true")
    ap.add_argument("--bearly", action="store_true")
    ap.add_argument("--ns", type=int, default=2)
    ap.add_argument("--earlyq", type=int, default=0)
    ap.add_argument("--tight", type=int, default=0)
    ap.add_argument("--mscale", action="store_true")
    ap.add_argument("--pkmul", action="store_true")
    ap.add_argument("--sparse", action="store_true")
    ap.add_argument("--prioA", action="store_true")
    ap.add_argument("--prioslot", type=int, default=0)
    ap.add_argument("--ring", type=int, default=5)
    ap.add_argument("--epiprio", type=int, default=0)
    ap.add_argument("--qtail", action="store_true")
    ap.add_argument("--qfill", type=int, default=3)
    ap.add_argument("--tail2", action="store_true")
    ap.add_argument("--pfh", type=int, default=0)
    ap.add_argument("--stag", type=int, default=0)
    ap.add_argument("--spread", type=int, default=1)
    ap.add_argument("--stamps", action="store_true")
    ap.add_argument("--rt", action="store_true")
    ap.add_argument("--both", action="store_true")
    ap.add_argument("--drainstamp", action="store_true")
    ap.add_argument("--ldflag", default="")
    ap.add_argument("--qflag", default="")
    ap.add_argument("--stflag", default="sc0 sc1 nt")
    opt = ap.parse_args()
    open(opt.o, "w").write(build(opt))
```

```python
import sys, math, argparse, struct

KNAME = "standalone__gqa_softmax__near_ridge_kernel"
C_SCALE = (128 ** -0.5) * math.log2(math.e)
def f32bits(x): return struct.unpack("<I", struct.pack("<f", x))[0]

class Gen:
    def __init__(self, opt):
        self.o = opt; self.L = []; self.vm = []; self.nstamp = 0; self.nlab = 0; self.ncall = -1
    def e(self, s): self.L.append("    " + s)
    def lab(self, s): self.L.append(s + ":")
    def newlab(self, p="L"):
        self.nlab += 1; return f"{p}_{self.nlab}"
    def vm_issue(self, tag): self.vm.append(tag)
    def vm_wait(self, tags):
        idx = [i for i, t in enumerate(self.vm) if t in tags]
        if not idx: return
        self.e(f"s_waitcnt vmcnt({min(63, len(self.vm) - 1 - max(idx))})")
    def stamp(self):
        if not self.o.stamps: return
        if self.o.both:
            self.ncall += 1
            if self.ncall in (1, 2, 10): return
            i = self.nstamp; self.nstamp += 1
            assert i < 13
            self.e(f"s_memrealtime s[{50+4*i}:{51+4*i}]"); self.e(f"s_memtime s[{52+4*i}:{53+4*i}]")
            return
        i = self.nstamp; self.nstamp += 1
        assert i < 24
        self.e(f"{'s_memrealtime' if self.o.rt else 's_memtime'} s[{50+2*i}:{51+2*i}]")

def parse_sched(txt):
    d = {}
    for tok in txt.replace("_", " ").split():
        j, lst = tok.split(":")
        d[int(j)] = [x for x in lst.split(",") if x]
    return d

def build(opt):
    g = Gen(opt); e = g.e
    R = opt.ring; NS = opt.ns; EQ = opt.earlyq; TIGHT = opt.tight
    KBASE = 0; VBASE = R * 16384
    lds_bytes = 163840
    STG = 2 * R * 16384
    FLAG_OFF = 4 * 16384 if R == 5 else 0
    ldflag = opt.ldflag; qflag = opt.qflag; stflag = opt.stflag
    needK = lambda p: p
    needV = lambda p: p + 1
    schedB = parse_sched(opt.schedB)
    schedA = parse_sched(opt.schedA)
    when = {}
    for d in (schedB, schedA):
        for j, l in d.items():
            for x in l:
                assert x not in when; when[x] = j
    for p in range(8):
        if p > 0:
            w_ = when[f"K{p}"]
            assert w_ < needK(p) and (p < R or w_ >= p - R + 1 + NS) and (R == 4 or p not in (3, 4) or w_ >= 1), f"K{p}"
        w_ = when[f"V{p}"]
        assert w_ < needV(p) and (p < R or w_ >= p - R + 3 - TIGHT + NS) and (R == 4 or p not in (3, 4) or w_ >= NS + 1 - EQ), f"V{p}"
    if R == 4: assert when["Qa"] >= 1 and when["Qb"] >= 1
    assert all(j <= NS + 1 for j in schedB) and all(j >= 2 or j == -1 for j in schedA)
    sKSRD, sVSRD, sQSRD, sOSRD = 8, 12, 16, 20
    sW4K = 24; sKVOFF = 25; sQOFF = 26; sC = 27; sREDO = 28; sTMP = 29; sWID = 30; sT2 = 31; sOST = 37; sKV = 38; sSTG = 39; sISB = 40; sFLAG = 41; sC1 = 36; sPF = 3
    vLANE = 0; t0, t1, t2 = 1, 2, 3
    vQ = 4
    vO = 36
    vS = [100, 116]
    vP = [132, 140]
    vK = 148
    vV = 180
    vL = 212
    vONE = 220
    vNM = 224
    vKA = 232
    vVA = 236
    vDK = 244
    vDV = 248
    vOW = 250; vOR = 251; vOS = 252; vIDX = 253; vPF = 254; vPFD = 255
    SP = opt.sparse
    Preg = (lambda n, qb: vP[0] + 8 * qb + 4 * (n & 1)) if SP else (lambda n, qb: vP[n & 1] + 4 * qb)
    NV = 256

    for l in """Kernarg: 0 q, 8 k, 16 v, 24 out, 32 debug, 40 ws.  One workgroup (8 waves x 32 q rows) per (batch, q head).
S^T = K.Q^T and O^T = V^T.P^T with v_mfma_f32_16x16x32_bf16; K/V tiles (64 keys) stream into two LDS rings by LDS-DMA
(XOR-swizzled images, V read with ds_read_b64_tr_b16).  Waves 0-3 lead, waves 4-7 lag by two tiles and load for them meanwhile.
Softmax: p = exp2(c*s - c*m), c = log2(e)/sqrt(D) (folded into Q, and -c*m into the MFMA C input, after the first 64 keys);
row sums by a ones-row (S)MFMA over the bf16 p.  m starts as the exact row max of the first 32 keys (so the row sum is >= 1 and nothing
underflows that the true max would keep).  Run-time check at the end: if any row sum exceeds 2^40 or is not finite, that
stand-in was unsafe and the whole workgroup recomputes with the true row max over all keys (L_redo).""".split("\n"):
        g.L.append("; " + l)
    g.L.append(f"; @launch grid=(256,1,1) block=(512,1,1) lds={lds_bytes}")
    g.L.append('.amdgcn_target "amdgcn-amd-amdhsa--gfx950"')
    g.L.append(".text"); g.L.append(f".globl {KNAME}"); g.L.append(".p2align 8"); g.L.append(f".type {KNAME},@function")
    g.lab(KNAME)
    e("s_load_dwordx4 s[4:7], s[0:1], 0")
    e("s_load_dwordx4 s[32:35], s[0:1], 16")
    g.stamp()
    if opt.stamps: e("s_memrealtime s[46:47]"); e("s_load_dwordx2 s[44:45], s[0:1], 40")
    e("s_cmp_ge_u32 s2, 256")
    e("s_cbranch_scc1 L_end")
    e(f"v_lshrrev_b32 v{t0}, 6, v0")
    e(f"v_and_b32 v{vLANE}, 63, v0")
    e(f"v_readfirstlane_b32 s{sWID}, v{t0}")
    e("s_and_b32 s36, s2, 7")
    e("s_lshr_b32 s37, s2, 3")
    e("s_lshl_b32 s38, s36, 5")
    e("s_add_u32 s38, s38, s37")
    e(f"s_lshl_b32 s{sQOFF}, s38, 16")
    e("s_lshl_b32 s38, s36, 3")
    e("s_lshr_b32 s37, s37, 2")
    e("s_add_u32 s38, s38, s37")
    e(f"s_lshl_b32 s{sKVOFF}, s38, 17")
    e(f"s_mov_b32 s{sREDO}, 0")
    e(f"s_mov_b32 s{sC}, 0x{f32bits(C_SCALE):08x}")
    e(f"s_lshl_b32 s36, s{sWID}, 13")
    e(f"s_add_u32 s{sQOFF}, s{sQOFF}, s36")
    e(f"s_and_b32 s36, s{sWID}, 3")
    e(f"s_lshl_b32 s{sW4K}, s36, 12")
    e(f"s_lshr_b32 s{sISB}, s{sWID}, 2")
    e(f"s_lshl_b32 s{sSTG}, s36, 13")
    if R == 5:
        e(f"s_mul_i32 s{sTMP}, s{sISB}, {VBASE}")
        e(f"s_add_u32 s{sSTG}, s{sSTG}, s{sTMP}")
        e(f"s_add_u32 s{sSTG}, s{sSTG}, {3*16384}")
    else:
        e(f"s_add_u32 s{sSTG}, s{sSTG}, {STG}")
    def srd(d, p, n):
        e(f"s_mov_b32 s{d}, s{p}"); e(f"s_and_b32 s{d+1}, s{p+1}, 0xffff"); e(f"s_mov_b32 s{d+2}, {n}"); e(f"s_mov_b32 s{d+3}, 0x20000")
    g.lab("L_restart")
    e(f"v_lshrrev_b32 v{t0}, 4, v{vLANE}")
    e(f"v_and_b32 v{t1}, 15, v{vLANE}")
    e(f"v_xor_b32 v{t2}, v{t0}, v{t1}")
    e(f"v_lshlrev_b32 v{vDV}, 8, v{t0}")
    e(f"v_lshl_add_u32 v{vDK}, v{t2}, 4, v{vDV}")
    for p in range(1, 4): e(f"v_xor_b32 v{vDK+p}, {64*p}, v{vDK}")
    e(f"v_lshlrev_b32 v{t2}, 1, v{t0}")
    e(f"v_xor_b32 v{t2}, v{t2}, v{t1}")
    e(f"v_lshl_add_u32 v{vDV}, v{t2}, 4, v{vDV}")
    e(f"v_xor_b32 v{vDV+1}, 128, v{vDV}")
    e(f"s_add_u32 s{sKV}, s{sKVOFF}, s{sW4K}")
    e(f"s_mov_b32 s{sFLAG}, 0")
    e("s_waitcnt lgkmcnt(0)")
    srd(sKSRD, 6, 8388608)
    def dma_items(x):
        out = []
        if x == "CP":
            out += ["s_getpc_b64 s[42:43]", f"s_add_u32 s42, s42, s{sW4K}", "s_addc_u32 s43, s43, 0", f"v_lshlrev_b32 v{t0}, 6, v{vLANE}",
                    f"v_mov_b32 v{vO+1}, s43", f"v_add_co_u32 v{vO}, vcc, s42, v{t0}", "s_nop 1", f"v_addc_co_u32 v{vO+1}, vcc, 0, v{vO+1}, vcc"]
            out.append((f"global_load_dword v{vO+2}, v[{vO}:{vO+1}], off", x))
            return out
        if x[0] == "P":
            kind, t = x[1], int(x[2:])
            srdn = sKSRD if kind == "K" else sVSRD
            out.append(f"s_add_u32 s{sTMP}, s{sPF}, {t*16384}")
            out.append((f"buffer_load_dword v{vPFD}, v{vPF}, s[{srdn}:{srdn+3}], s{sTMP} offen", x))
            return out
        if x == "TQ":
            out.append(f"v_lshlrev_b32 v{t0}, 7, v{vLANE}")
            out.append((f"buffer_load_dword v{t1}, v{t0}, s[{sQSRD}:{sQSRD+3}], s{sQOFF} offen", x))
            return out
        if x[0] == "Q":
            half = 0 if x == "Qa" else 1
            out += [f"s_add_u32 m0, s{sSTG}, {4096*half}", f"s_add_u32 s{sTMP}, s{sQOFF}, {4096*half}"]
            for i in range(4):
                out.append((f"buffer_load_dwordx4 v{vDK+i}, s[{sQSRD}:{sQSRD+3}], s{sTMP} offen offset:{1024*i} {qflag} lds", x))
            return out
        kind, p = x[0], int(x[1:])
        base = (KBASE if kind == "K" else VBASE) + (p % R) * 16384
        srdn = sKSRD if kind == "K" else sVSRD
        out += [f"s_add_u32 m0, s{sW4K}, {base}", f"s_add_u32 s{sTMP}, s{sKV}, {p*16384}"]
        for i in range(4):
            va = vDK + i if kind == "K" else vDV + (i & 1)
            out.append((f"buffer_load_dwordx4 v{va}, s[{srdn}:{srdn+3}], s{sTMP} offen offset:{1024*i} {ldflag} lds", x))
        return out
    def emit_items(lst):
        for y in lst:
            if isinstance(y, tuple): e(y[0]); g.vm_issue(y[1])
            else: e(y)
    def dma(x): emit_items(dma_items(x))
    def guarded(lst):
        l = g.newlab("L_nd")
        if opt.vg: e(f"s_cbranch_vccnz {l}")
        else: e(f"s_cmp_lg_u32 s{sISB}, 0"); e(f"s_cbranch_scc1 {l}")
        emit_items(lst)
        g.lab(l)
    def addrs():
        e(f"v_and_b32 v{t0}, 15, v{vLANE}")
        e(f"v_lshrrev_b32 v{t2}, 4, v{vLANE}")
        e(f"v_xor_b32 v{t1}, v{t0}, v{t2}")
        e(f"v_lshlrev_b32 v{t1}, 4, v{t1}")
        e(f"v_lshl_add_u32 v{vKA}, v{t0}, 8, v{t1}")
        for s in range(1, 4): e(f"v_xor_b32 v{vKA+s}, {64*s}, v{vKA}")
        e(f"v_lshrrev_b32 v{t0}, 2, v{vLANE}")
        e(f"v_and_b32 v{t1}, 7, v{t0}")
        e(f"v_lshlrev_b32 v{t1}, 5, v{t1}")
        e(f"v_lshl_add_u32 v{t1}, v{t0}, 8, v{t1}")
        e(f"v_and_b32 v{t0}, 3, v{vLANE}")
        e(f"v_lshl_add_u32 v{t1}, v{t0}, 3, v{t1}")
        e(f"v_add_u32 v{vVA}, {VBASE}, v{t1}")
        for db in range(1, 8): e(f"v_xor_b32 v{vVA+db}, {32*db}, v{vVA}")
        for s in range(4): e(f"v_add_u32 v{vV+s}, s{sSTG}, v{vKA+s}")
        for i in range(4): e(f"v_mov_b32 v{vONE+i}, 0x3f803f80")
        if SP:
            for i in range(8): e(f"v_mov_b32 v{vL+i}, 0")
            e(f"v_and_b32 v{t0}, 1, v{vLANE}"); e(f"v_mul_u32_u24 v{t0}, 0xaaaa, v{t0}"); e(f"v_add_u32 v{t0}, 0x4444, v{t0}")
            e(f"v_lshl_add_u32 v{vIDX}, v{t0}, 16, v{t0}")
        if R == 5: e(f"s_sub_u32 s{sOST}, s{sSTG}, s{sW4K}")
        else: e(f"s_lshl_b32 s{sOST}, s{sWID}, 12"); e(f"s_add_u32 s{sOST}, s{sOST}, {STG}")
        e(f"v_and_b32 v{t0}, 15, v{vLANE}")
        e(f"v_lshlrev_b32 v{t1}, 7, v{t0}")
        e(f"v_and_b32 v{vOW}, 1, v{t2}")
        e(f"v_lshl_add_u32 v{t1}, v{vOW}, 3, v{t1}")
        e(f"v_and_b32 v{t0}, 7, v{t0}")
        e(f"v_lshrrev_b32 v{vOW}, 1, v{t2}")
        e(f"v_xor_b32 v{t0}, v{t0}, v{vOW}")
        e(f"v_lshl_add_u32 v{t1}, v{t0}, 4, v{t1}")
        e(f"v_add_u32 v{vOW}, s{sOST}, v{t1}")
        e(f"v_lshlrev_b32 v{vOR}, 4, v{vLANE}")
        e(f"v_add_u32 v{vOR}, s{sOST}, v{vOR}")
        e(f"v_lshrrev_b32 v{t0}, 3, v{vLANE}")
        e(f"v_and_b32 v{t1}, 7, v{vLANE}")
        e(f"v_xor_b32 v{t1}, v{t1}, v{t0}")
        e(f"v_lshlrev_b32 v{t0}, 8, v{t0}")
        e(f"v_lshl_add_u32 v{vOS}, v{t1}, 4, v{t0}")
        if opt.mscale: selectors()
        if any(x[0] == "P" for x in when):
            e(f"s_bfe_u32 s{sPF}, s2, 0x20003"); e(f"s_lshl_b32 s{sPF}, s{sPF}, 12"); e(f"s_add_u32 s{sPF}, s{sPF}, s{sKVOFF}")
            e(f"s_lshl_b32 s{sTMP}, s{sW4K}, {2 - opt.pfh}"); e(f"s_add_u32 s{sPF}, s{sPF}, s{sTMP}") if opt.pfh == 0 else None
            if opt.pfh == 0: e(f"v_lshlrev_b32 v{vPF}, 6, v{vLANE}")
            else:
                e(f"v_and_b32 v{t0}, 7, v{vLANE}"); e(f"v_lshlrev_b32 v{t0}, 7, v{t0}"); e(f"v_lshrrev_b32 v{t1}, 3, v{vLANE}"); e(f"v_and_b32 v{t1}, 1, v{t1}")
                e(f"v_lshl_add_u32 v{vPF}, v{t1}, 14, v{t0}"); e(f"s_lshr_b32 s{sTMP}, s{sW4K}, 2"); e(f"s_add_u32 s{sPF}, s{sPF}, s{sTMP}")
    vSEL = vO + 32
    def bf16r(x):
        u = f32bits(x); return (u + 0x7fff + ((u >> 16) & 1)) >> 16
    c_hi = bf16r(C_SCALE); c_lo = bf16r(C_SCALE - struct.unpack("<f", struct.pack("<I", c_hi << 16))[0])
    def selectors():
        e(f"v_bfe_u32 v{t0}, v{vLANE}, 2, 2"); e(f"v_lshrrev_b32 v{t1}, 4, v{vLANE}")
        e(f"v_cmp_eq_u32 vcc, v{t0}, v{t1}")
        e(f"v_and_b32 v{t0}, 1, v{vLANE}"); e(f"v_lshlrev_b32 v{t0}, 4, v{t0}")
        e(f"v_and_b32 v{t1}, 2, v{vLANE}")
        e(f"v_cmp_eq_u32 s[42:43], 0, v{t1}")
        for k_, cv in enumerate((c_hi, c_lo)):
            b = vSEL + 6 * k_
            e(f"v_mov_b32 v{t2}, {cv}"); e(f"v_lshlrev_b32 v{t2}, v{t0}, v{t2}")
            e(f"v_cndmask_b32 v{t2}, 0, v{t2}, vcc")
            e(f"v_cndmask_b32 v{b+2}, 0, v{t2}, s[42:43]"); e(f"v_cndmask_b32 v{b+3}, v{t2}, 0, s[42:43]")
            for z in (0, 1, 4, 5): e(f"v_mov_b32 v{b+z}, 0")
    def qread():
        for qb in range(2):
            for s in range(4): e(f"ds_read_b128 v[{vQ+16*qb+4*s}:{vQ+16*qb+4*s+3}], v{vV+s} offset:{4096*qb}")
    needed_at = lambda j: {f"K{p}" for p in range(8) if needK(p) == j} | {f"V{p}" for p in range(8) if needV(p) == j}

    e(f"s_cmp_lg_u32 s{sISB}, 0")
    e("s_cbranch_scc1 L_proB")
    g.vm = []
    dma("K0"); srd(sQSRD, 4, 16777216); dma("Qa"); dma("Qb")
    e(f"s_mov_b32 s{sC1}, s{sC}")
    srd(sVSRD, 32, 8388608); srd(sOSRD, 34, 16777216)
    for x in schedA.get(-1, []): dma(x)
    addrs()
    if opt.prioA: e("s_setprio 1")
    g.vm_wait({"K0"})
    vmA = g.vm
    e("s_branch L_main")
    g.lab("L_proB")
    g.vm = []
    srd(sQSRD, 4, 16777216); srd(sVSRD, 32, 8388608); srd(sOSRD, 34, 16777216)
    addrs()
    for x in schedB.get(-1, []): dma(x)
    if opt.dry:
        e(f"s_mov_b32 s{sFLAG}, 1"); e("s_branch L_scale")
        g.lab("L_dry_ret")
        e(f"s_mov_b32 s{sFLAG}, 0")
    for j in range(NS):
        g.vm_wait(needed_at(j))
        e("s_barrier")
        for x in schedB.get(j, []): dma(x)
    if EQ:
        e(f"s_mov_b32 s{sC1}, 1.0")
        g.vm_wait({"Qa", "Qb"})
        qread()
        e("s_waitcnt lgkmcnt(0)")
        e("s_branch L_scale")
        g.lab("L_scale_ret")
    else:
        e(f"s_mov_b32 s{sC1}, s{sC}")
    g.vm_wait(needed_at(NS))
    vmB = g.vm
    g.lab("L_main")
    g.vm = vmA
    st = {"K": 0, "V": 0}
    def rebias(kind, t):
        want = 65536 if (t % R) == 4 else 0
        out = []
        if st[kind] != want:
            regs = [vKA + s for s in range(4)] if kind == "K" else [vVA + d for d in range(8)]
            out = [f"v_add_u32 v{r_}, {65536 if want else -65536 & 0xffffffff}, v{r_}" for r_ in regs]
            st[kind] = want
        return out
    def kread(n, f):
        t, blk = n >> 1, n & 1; kt, s = f >> 2, f & 3
        off = KBASE + (t % R) * 16384 + blk * 8192 + kt * 4096 - st['K']
        assert 0 <= off < 65536
        return f"ds_read_b128 v[{vK+4*f}:{vK+4*f+3}], v{vKA+s} offset:{off}"
    vreg = lambda n, db: (vK if (opt.tail2 and n == 15) else vV) + 4 * db
    def vread(n, db, h):
        t, blk = n >> 1, n & 1
        d = vreg(n, db) + 2 * h
        off = (t % R) * 16384 + (blk * 32 + 16 * h) * 256 - st['V']
        assert 0 <= off < 65536
        return f"ds_read_b64_tr_b16 v[{d}:{d+1}], v{vVA+db} offset:{off}"
    MF = "v_mfma_f32_16x16x32_bf16"
    def qk(n, m):
        kt, qb, s = m >> 3, (m >> 2) & 1, m & 3
        S = vS[n & 1] + 8 * qb + 4 * kt
        cin = f"v[{S}:{S+3}]" if s else (f"v[{vNM+4*qb}:{vNM+4*qb+3}]" if n >= 2 else "0")
        a = vK + 16 * kt + 4 * s; b = vQ + 16 * qb + 4 * s
        return f"{MF} v[{S}:{S+3}], v[{a}:{a+3}], v[{b}:{b+3}], {cin}"
    def pv(n, db, qb):
        O = vO + 8 * db + 4 * qb; P = Preg(n, qb); a = vreg(n, db)
        cin = "0" if n == 0 else f"v[{O}:{O+3}]"
        return f"{MF} v[{O}:{O+3}], v[{a}:{a+3}], v[{P}:{P+3}], {cin}"
    def rsum(n, qb):
        L = vL + 4 * qb; P = Preg(n, qb)
        cin = "0" if n == 0 else f"v[{L}:{L+3}]"
        return f"{MF} v[{L}:{L+3}], v[{vONE}:{vONE+3}], v[{P}:{P+3}], {cin}"
    def pre(n, i): return f"v_fma_f32 v{vS[n&1]+i}, v{vS[n&1]+i}, s{sC1}, v{vNM+4*(i>>3)}" if n < 2 else None
    def exp(n, i): return f"v_exp_f32 v{vS[n&1]+i}, v{vS[n&1]+i}"
    def rs64(qb):
        L = vL + 4 * qb; P = vP[0] + 8 * qb
        return f"v_smfmac_f32_16x16x64_bf16 v[{L}:{L+3}], v[{vONE}:{vONE+3}], v[{P}:{P+7}], v{vIDX}"
    def cvt(n, k): return f"v_cvt_pk_bf16_f32 v{Preg(n, k >> 2) + (k & 3)}, v{vS[n&1]+2*k}, v{vS[n&1]+2*k+1}"
    def scaleq(r_):
        return [f"v_lshlrev_b32 v{t0}, 16, v{r_}", f"v_and_b32 v{t1}, 0xffff0000, v{r_}",
                f"v_mul_f32 v{t0}, s{sC}, v{t0}", f"v_mul_f32 v{t1}, s{sC}, v{t1}", f"v_cvt_pk_bf16_f32 v{r_}, v{t0}, v{t1}"]
    def both_wait(t):
        n = 63
        for vm, j in ((vmA, t), (vmB, t + NS)):
            idx = [i for i, x in enumerate(vm) if x in needed_at(j)]
            if idx: n = min(n, len(vm) - 1 - max(idx))
        return [f"s_waitcnt vmcnt({n})"] if n < 63 else []
    def rowmax(dst, srcs, u):
        out = []
        out.append(f"v_max3_f32 v{dst}, v{srcs[0]}, v{srcs[1]}, v{srcs[2]}")
        out.append(f"v_max3_f32 v{u}, v{srcs[3]}, v{srcs[4]}, v{srcs[5]}")
        out.append(f"v_max3_f32 v{dst}, v{dst}, v{srcs[6]}, v{srcs[7]}")
        out.append(f"v_max_f32 v{dst}, v{dst}, v{u}")
        return out
    def xlane(regs, us):
        for op in ("v_permlane32_swap_b32", "v_permlane16_swap_b32"):
            for r_, u in zip(regs, us): e(f"v_mov_b32 v{u}, v{r_}")
            e("s_nop 1")
            for r_, u in zip(regs, us): e(f"{op} v{r_}, v{u}")
            for r_, u in zip(regs, us): e(f"v_max_f32 v{r_}, v{r_}, v{u}")

    if opt.vg: e(f"s_cmp_lg_u32 s{sISB}, 0"); e("s_cselect_b64 vcc, -1, 0")
    g.stamp()
    e("s_barrier")
    g.stamp()
    for f in range(8): e(kread(0, f))
    e(f"s_cmp_lg_u32 s{sISB}, 0"); e("s_cbranch_scc1 L_bq")
    g.vm_wait({"Qb"})
    if EQ: qread()
    e("s_branch L_haveq")
    g.lab("L_bq")
    g.vm = vmB
    for x in schedB.get(NS, []): dma(x)
    if not EQ: g.vm_wait({"Qa", "Qb"})
    g.vm = vmA
    g.lab("L_haveq")
    if not EQ: qread()
    e("s_waitcnt lgkmcnt(0)")
    g.stamp()
    if opt.prio0: e("s_setprio 1")
    S0 = vS[0]
    for m in range(16):
        e(qk(0, m))
        if (m >> 2) & 1: e(kread(1, 4 * (m >> 3) + (m & 3)))
    e("s_waitcnt lgkmcnt(4)")
    for m in range(4): e(qk(1, m))
    e("s_nop 3")
    e(f"s_cmp_lg_u32 s{sREDO}, 0")
    e("s_cbranch_scc1 L_have_m")
    u = vV + 8
    a_ = rowmax(vNM, [S0 + i for i in range(8)], u); b_ = rowmax(vNM + 4, [S0 + 8 + i for i in range(8)], u + 1)
    for x, y in zip(a_, b_): e(x); e(y)
    xlane([vNM, vNM + 4], [u, u + 1])
    e(f"v_mul_f32 v{vNM}, s{sC1}, v{vNM}"); e(f"v_mul_f32 v{vNM+4}, s{sC1}, v{vNM+4}")
    e(f"v_sub_f32 v{vNM}, 0, v{vNM}"); e(f"v_sub_f32 v{vNM+4}, 0, v{vNM+4}")
    g.lab("L_have_m")
    e(pre(0, 0))
    mf = [qk(1, m) for m in range(4, 16)]
    for i in range(10):
        if i == 2: e("s_waitcnt lgkmcnt(0)")
        if mf: e(mf.pop(0))
        e(pre(0, i + 1)); e(exp(0, i))
        if i % 2 == 0 and i >= 2: e(cvt(0, i // 2 - 1))
        if i >= 8 and mf: e(mf.pop(0))
    assert not mf
    if opt.bearly:
        assert not EQ
        e(f"s_cmp_lg_u32 s{sISB}, 0"); e("s_cbranch_scc1 L_scale")
        g.lab("L_scale_ret")
    for x in both_wait(1): e(x)
    e("s_barrier")
    if schedB.get(NS + 1):
        e(f"s_cmp_eq_u32 s{sISB}, 0"); e("s_cbranch_scc1 L_noB1")
        g.vm = vmB
        for x in schedB[NS + 1]: dma(x)
        g.vm = vmA
        g.lab("L_noB1")
    if opt.mscale:
        assert not (EQ or opt.bearly or opt.dry)
        rd0 = [kread(2, f) for f in range(8)] + [vread(0, db, h) for db in range(8) for h in range(2)][:11]
        va = []
        for i in range(10, 16):
            va.append([pre(0, i + 1) if i < 15 else pre(1, 0)]); va.append([exp(0, i)])
            if i % 2 == 0: va.append([cvt(0, i // 2 - 1)])
        va += [[f"v_mov_b32 v{vNM+4*qb+i}, v{vNM+4*qb}"] for qb in range(2) for i in range(1, 4)]
        def sm(f, k_):
            D = vO + 8 * (f & 1) + 4 * (k_ >> 1); a = vSEL + 6 * (k_ & 1) + (2 if k_ < 2 else 0); b = vQ + 4 * f
            return f"{MF} v[{D}:{D+3}], v[{a}:{a+3}], v[{b}:{b+3}], " + ("0" if k_ % 2 == 0 else f"v[{D}:{D+3}]")
        def sc(f, j): D = vO + 8 * (f & 1); return f"v_cvt_pk_bf16_f32 v{vQ+4*f+j}, v{D+2*j}, v{D+2*j+1}"
        for f in range(9):
            for k_ in range(4):
                if f < 8: e(sm(f, k_))
                elif k_ == 0: e("s_nop 3")
                fl = []
                if f >= 1 and k_ >= 2: fl += [sc(f - 1, 2 * (k_ - 2)), sc(f - 1, 2 * (k_ - 2) + 1)]
                elif f < 8:
                    if rd0: fl.append(rd0.pop(0))
                    if rd0 and k_ == 0 and f < 3: fl.append(rd0.pop(0))
                    elif va: fl += va.pop(0)
                    if f == 0 and va: fl += va.pop(0)
                for x in fl: e(x)
        for x in rd0: e(x)
        for y in va:
            for x in y: e(x)
    else:
        rd0 = [kread(2, f) for f in range(8)] + [vread(0, db, h) for db in range(8) for h in range(2)][:11]
        for i in range(10, 16):
            for _ in range(4):
                if rd0: e(rd0.pop(0))
            e(pre(0, i + 1) if i < 15 else pre(1, 0)); e(exp(0, i))
            if i % 2 == 0: e(cvt(0, i // 2 - 1))
        for qb in range(2):
            for i in range(1, 4): e(f"v_mov_b32 v{vNM+4*qb+i}, v{vNM+4*qb}")
        if opt.bearly or EQ: e(f"s_cmp_lg_u32 s{sISB}, 0"); e("s_cbranch_scc1 L_scale_done")
        g.lab("L_scale")
        for r_ in range(vQ, vQ + 32):
            for x in scaleq(r_): e(x)
        if opt.bearly or EQ:
            e(f"s_cmp_lg_u32 s{sISB}, 0"); e("s_cbranch_scc1 L_scale_ret")
            g.lab("L_scale_done")
        if opt.dry: e(f"s_cmp_lg_u32 s{sFLAG}, 0"); e("s_cbranch_scc1 L_dry_ret")
    if opt.prio0: e("s_setprio 0")
    g.stamp()
    plan = {0: [("Vp", 5, 1)], 1: [("Vp", 6, 0), ("Vp", 6, 1)], 2: [("Vp", 7, 0)], 3: [("Vp", 7, 1), ("K", 0)], 4: [("K", 1)],
            5: [("K", 2), ("K", 3)], 6: [("K", 4)], 7: [("K", 5), ("K", 6)], 8: [("K", 7)], 9: [("V", 0, 0), ("V", 0, 1)],
            10: [("V", 1, 0)], 11: [("V", 1, 1), ("V", 2, 0)], 12: [("V", 2, 1)], 13: [("V", 3, 0), ("V", 3, 1)], 14: [("V", 4, 0)], 15: [("V", 4, 1), ("V", 5, 0)]}
    ea = [f"v_mov_b32 v{vKA}, v{vOW}"] + [f"v_xor_b32 v{vKA+j}, {32*j}, v{vOW}" for j in range(1, 4)] + [f"s_add_u32 s{sT2}, s{sQOFF}, 4096", f"s_mov_b32 s{sTMP}, 0x{f32bits(2.0**40):08x}"]
    plan0 = plan
    planT = {0: [("Vp", 5, 1)], 1: [("Vp", 6, 0), ("Vp", 6, 1)], 2: [("Vp", 7, 0), ("Vp", 7, 1)], 3: [], 4: [("K", 0)], 5: [("K", 1), ("K", 2)],
             6: [("K", 3)], 7: [("K", 4), ("K", 5)], 8: [("K", 6)], 9: [("K", 7), ("V", 0, 0)], 10: [("V", 0, 1)], 11: [("V", 1, 0), ("V", 1, 1)],
             12: [("V", 2, 0)], 13: [("V", 2, 1), ("V", 3, 0)], 14: [("V", 3, 1)], 15: [("V", 4, 0), ("V", 4, 1), ("V", 5, 0)]}
    pend = []; carry = []; ncarry = 0
    for n in range(1, 15):
        hasbar = (n % 2 == 0)
        tight = TIGHT and hasbar
        plan = planT if tight else plan0
        if n == 14 and opt.tail2:
            assert tight
            plan = dict(planT)
            plan.update({4: [("W", 0, 0)], 5: [("W", 0, 1), ("W", 1, 0)], 6: [("W", 1, 1)], 7: [("W", 2, 0), ("W", 2, 1)],
                         8: [("W", 3, 0)], 9: [("W", 3, 1), ("V", 0, 0)]})
        BP = 4 if tight else 3
        if n == opt.prioslot: e("s_setprio 2")
        e(f"s_waitcnt lgkmcnt({11 - ncarry})")
        for pr in range(16):
            if pr == 8:
                if not SP: e(rsum(n - 1, 0))
                elif n % 2 == 0: e(rs64(1))
                e(f"s_waitcnt lgkmcnt({(6 if tight else 7) - (2 if opt.arr2 else 0) if (n < 14 or opt.tail2) else 0})")
            m0_, m1_ = (qk(n + 1, 2 * pr), qk(n + 1, 2 * pr + 1)) if pr < 8 else (pv(n - 1, pr - 8, 0), pv(n - 1, pr - 8, 1))
            def mid():
                if pr == BP:
                    if hasbar:
                        t = n // 2 + 1
                        lg = ["s_waitcnt lgkmcnt(0)"] if tight else []
                        bw = both_wait(t)
                        blk = ([bw[0] + " lgkmcnt(0)"] if (bw and lg) else bw + lg) + ["s_barrier"]
                        if t >= 9 - NS:
                            idx = [i for i, x in enumerate(vmA) if x in needed_at(t)]
                            guarded([f"s_waitcnt vmcnt({len(vmA) - 1 - max(idx)})" + (" lgkmcnt(0)" if lg else ""), "s_barrier"])
                        else:
                            for x in blk: e(x)
                        for x in schedA.get(t, []):
                            it = dma_items(x)
                            if opt.dblk == 1:
                                pend.append(it[:3])
                                for y in it[3:]: pend.append([y])
                            elif opt.dblk == 2: pend.append(it[:4]); pend.append(it[4:])
                            elif opt.dblk == 4 or not pend: pend.append(it)
                            else: pend[-1] = pend[-1] + it
                    if n < 14:
                        for x in rebias("K", (n + 2) >> 1): e(x)
                if pr == 9:
                    for x in rebias("V", n >> 1): e(x)
            def fill(prr, nn):
                for r_ in plan[prr]:
                    if r_[0] == "K":
                        if nn < 14: e(kread(nn + 2, r_[1]))
                    elif r_[0] == "W": e(vread(15, r_[1], r_[2]))
                    elif r_[0] == "E": e(ea.pop(0))
                    elif r_[0] == "Vp": e(vread(nn - 1, r_[1], r_[2]))
                    else: e(vread(nn, r_[1], r_[2]))
                if n == 1 and pr < 15: e(pre(1, pr + 1))
                if tight and pr in (2, 4): pass
                elif tight and pr == 3: e(cvt(n, 0)); e(cvt(n, 1))
                elif pr % 2 == 0: e(cvt(n, pr // 2 - 1) if pr else cvt(n - 1, 7))
            mark = len(g.L)
            mid()
            fill(pr, n)
            if opt.stag:
                if pend and pr >= BP and (pr - BP) % opt.stag == 0 and (pr - BP) // opt.stag < 4:
                    k_ = (pr - BP) // opt.stag
                    l_ = g.newlab("L_sg")
                    e(f"s_cmp_lg_u32 s{sWID}, {k_}"); e(f"s_cbranch_scc1 {l_}")
                    keep = list(g.vm)
                    for blk in pend: emit_items(blk)
                    if k_ < 3: g.vm[:] = keep
                    else: pend = []
                    g.lab(l_)
            elif pend and pr >= opt.dstart and pr % opt.spread == opt.spread - 1: guarded(pend.pop(0))
            F = g.L[mark:]; del g.L[mark:]
            if opt.arr2:
                e(m0_); g.L += carry; e(m1_); e(exp(n, pr)); carry = F
            else:
                e(m0_); e(exp(n, pr)); e(m1_); g.L += F
        ncarry = sum("ds_read" in x for x in carry)
        if n == 14: g.L += carry; carry = []
        if not SP: e(rsum(n - 1, 1))
        elif n % 2 == 1: e(rs64(0))
        if n % 2 == 1 or n == 14:
            for blk in pend: guarded(blk)
            pend = []
        if n % 2 == 0: g.stamp()
    if opt.tail2:
        lq = [(14, db, h) for db in range(6) for h in range(2)][:11]
        todo = [(14, 5, 1), (14, 6, 0), (14, 6, 1), (14, 7, 0), (14, 7, 1)] + [(15, db, h) for db in range(4, 8) for h in range(2)]
        def lwait(tags): e(f"s_waitcnt lgkmcnt({len(lq) - 1 - max(lq.index(x) for x in tags)})")
        for db in range(8):
            if db in (0, 2, 5): lwait([(14, d, h) for d in {0: (0, 1), 2: (2, 3, 4), 5: (5, 6, 7)}[db] for h in range(2)])
            e(pv(14, db, 0))
            if db == 0: e(cvt(14, 7))
            e(exp(15, 2 * db))
            if db == 0: e(ea.pop(0))
            e(pv(14, db, 1)); e(exp(15, 2 * db + 1))
            for _ in range(2):
                if todo: x = todo.pop(0); e(vread(*x)); lq.append(x)
            if db: e(cvt(15, db - 1))
            if db == 6: e(rs64(0))
            if ea and db >= 1: e(ea.pop(0))
        assert not todo and not ea and SP and opt.qtail
    else:
        e(cvt(14, 7))
        for x in [vread(14, 5, 1), vread(14, 6, 0), vread(14, 6, 1), vread(14, 7, 0), vread(14, 7, 1)]: e(x)
        e("s_waitcnt lgkmcnt(5)")
        for db in range(8):
            if db == 5: e("s_waitcnt lgkmcnt(10)")
            e(pv(14, db, 0)); e(exp(15, 2 * db))
            e(pv(14, db, 1)); e(exp(15, 2 * db + 1))
            e(vread(15, db, 0)); e(vread(15, db, 1))
            if db: e(cvt(15, db - 1))
            if db == 0 and not SP: e(rsum(14, 0))
            if db == 4 and not SP: e(rsum(14, 1))
            if db == 6 and SP: e(rs64(0))
            if ea and db >= 2: e(ea.pop(0))
    e(cvt(15, 7))
    g.stamp()
    rc = [t1, t2]
    if opt.pkmul: rc = [vONE, vONE + 2]
    def muls(db):
        if opt.pkmul:
            return [f"v_pk_mul_f32 v[{vO+8*db+4*qb+r_}:{vO+8*db+4*qb+r_+1}], v[{vO+8*db+4*qb+r_}:{vO+8*db+4*qb+r_+1}], v[{rc[qb]}:{rc[qb]+1}] op_sel_hi:[1,0]" for qb in range(2) for r_ in (0, 2)]
        return [f"v_mul_f32 v{vO+8*db+4*qb+r_}, v{rc[qb]}, v{vO+8*db+4*qb+r_}" for qb in range(2) for r_ in range(4)]
    def pack(db, Rr):
        out = []
        for qb in range(2):
            O = vO + 8 * db + 4 * qb
            out += [f"v_cvt_pk_bf16_f32 v{Rr+2*qb}, v{O}, v{O+1}", f"v_cvt_pk_bf16_f32 v{Rr+2*qb+1}, v{O+2}, v{O+3}",
                    f"ds_write_b64 v{vKA+(db&3)}, v[{Rr+2*qb}:{Rr+2*qb+1}] offset:{2048*qb}"]
        return out
    def rd(D): return [f"ds_read_b128 v[{D+4*i}:{D+4*i+3}], v{vOR} offset:{1024*i}" for i in range(4)]
    def stv(h, i, D): return f"buffer_store_dwordx4 v[{D+4*i}:{D+4*i+3}], v{vOS}, s[{sOSRD}:{sOSRD+3}], s{sQOFF if i < 2 else sT2} offen offset:{128*h+2048*(i&1)} {stflag}"
    if opt.qtail:
        assert SP and not opt.pkmul
        def nrm(db, qb):
            O = vO + 8 * db + 4 * qb; Rr = (vV if opt.tail2 else vK) + 4 * db + 2 * qb
            return [f"v_mul_f32 v{O+r_}, v{rc[qb]}, v{O+r_}" for r_ in range(4)] + [f"v_cvt_pk_bf16_f32 v{Rr}, v{O}, v{O+1}", f"v_cvt_pk_bf16_f32 v{Rr+1}, v{O+2}, v{O+3}",
                    f"ds_write_b64 v{vKA+(db&3)}, v[{Rr}:{Rr+1}] offset:{2048*qb}"]
        Dq = lambda qb, h: vS[0] + 16 * h + 8 * qb
        def rdq(qb, h): return [f"ds_read_b128 v[{Dq(qb,h)+4*i}:{Dq(qb,h)+4*i+3}], v{vOR} offset:{2048*qb+1024*i}" for i in range(2)]
        def stq(qb, h, i): return f"buffer_store_dwordx4 v[{Dq(qb,h)+4*i}:{Dq(qb,h)+4*i+3}], v{vOS}, s[{sOSRD}:{sOSRD+3}], s{sQOFF if qb == 0 else sT2} offen offset:{128*h+2048*i} {stflag}"
        e("s_nop 0" if opt.tail2 else "s_waitcnt lgkmcnt(8)")
        e(pv(15, 0, 0)); e(f"v_add_f32 v{vL}, v{vL}, v{vL+1}")
        e(rs64(1))
        e(pv(15, 1, 0)); e(f"v_rcp_f32 v{rc[0]}, v{vL}")
        e(pv(15, 2, 0)); e(f"v_cmp_nge_f32 vcc, s{sTMP}, v{vL}")
        e(pv(15, 3, 0)); e("s_waitcnt lgkmcnt(0)")
        w0 = nrm(0, 0)
        for db in range(4, 8):
            e(pv(15, db, 0))
            if db >= 5: e(w0.pop(0)); e(w0.pop(0))
        e(f"v_add_f32 v{vL+4}, v{vL+4}, v{vL+5}")
        fl = w0 + [f"v_rcp_f32 v{rc[1]}, v{vL+4}"] + nrm(1, 0) + [f"v_cmp_nge_f32 s[42:43], s{sTMP}, v{vL+4}"] + nrm(2, 0) + nrm(3, 0) + rdq(0, 0) + nrm(4, 0) + nrm(5, 0)
        for db in range(8):
            e(pv(15, db, 1))
            for _ in range(opt.qfill):
                if fl: e(fl.pop(0))
        for x in fl: e(x)
        e("s_or_b64 vcc, vcc, s[42:43]")
        e(f"s_cselect_b32 s{sFLAG}, 1, 0")
        e("s_waitcnt lgkmcnt(2)")
        e(stq(0, 0, 0))
        for x in nrm(6, 0): e(x)
        e(stq(0, 0, 1))
        for x in nrm(7, 0) + rdq(0, 1) + nrm(0, 1) + nrm(1, 1): e(x)
        e("s_waitcnt lgkmcnt(2)")
        e(stq(0, 1, 0))
        for x in nrm(2, 1): e(x)
        e(stq(0, 1, 1))
        for x in nrm(3, 1) + rdq(1, 0) + nrm(4, 1) + nrm(5, 1): e(x)
        e("s_waitcnt lgkmcnt(2)")
        e(stq(1, 0, 0))
        for x in nrm(6, 1): e(x)
        e(stq(1, 0, 1))
        for x in nrm(7, 1) + rdq(1, 1): e(x)
        e("s_waitcnt lgkmcnt(1)"); e(stq(1, 1, 0))
        e("s_waitcnt lgkmcnt(0)"); e(stq(1, 1, 1))
    else:
        if SP:
            e("s_waitcnt lgkmcnt(8)")
            e(pv(15, 0, 0)); e(rs64(1)); e(pv(15, 0, 1))
            for db in range(1, 4): e(pv(15, db, 0)); e(pv(15, db, 1))
            e("s_waitcnt lgkmcnt(0)")
            e(f"v_add_f32 v{vL}, v{vL}, v{vL+1}"); e(f"v_add_f32 v{vL+4}, v{vL+4}, v{vL+5}")
        else:
            e(rsum(15, 0))
            e("s_waitcnt lgkmcnt(8)")
            e(rsum(15, 1))
            for db in range(4): e(pv(15, db, 0)); e(pv(15, db, 1))
            e("s_waitcnt lgkmcnt(0)")
        e(f"v_rcp_f32 v{rc[0]}, v{vL}"); e(pv(15, 4, 0))
        e(f"v_rcp_f32 v{rc[1]}, v{vL+4}"); e(pv(15, 4, 1))
        e(f"v_cmp_nge_f32 vcc, s{sTMP}, v{vL}")
        e(f"v_cmp_nge_f32 s[42:43], s{sTMP}, v{vL+4}")
        ms = [pv(15, db, qb) for db in range(5, 8) for qb in range(2)]
        if opt.pkmul:
            for x in ms: e(x)
            ms = []
            e("s_setprio 3")
            for db in range(8):
                if db == 5: e("s_nop 0")
                for x in muls(db): e(x)
            e(f"s_setprio {opt.epiprio}")
            muls = lambda db: []
        elif opt.epiprio: e(f"s_setprio {opt.epiprio}")
        first = muls(0) + pack(0, vK) + muls(1) + pack(1, vK + 4)
        for k_, x in enumerate(first):
            if k_ % (2 if opt.pkmul else 3) == 0 and ms: e(ms.pop(0))
            e(x)
        assert not ms
        if opt.prioA or opt.prioslot: e("s_setprio 0")
        e("s_or_b64 vcc, vcc, s[42:43]")
        e(f"s_cselect_b32 s{sFLAG}, 1, 0")
        for db in (2, 3):
            for x in muls(db) + pack(db, vK + 4 * db): e(x)
        for x in rd(vS[0]): e(x)
        for x in muls(4) + pack(4, vK + 16) + muls(5): e(x)
        e("s_waitcnt lgkmcnt(2)")
        rest = pack(5, vK + 20) + muls(6) + pack(6, vK + 24) + muls(7)
        q4 = len(rest) // 4
        for i in range(4):
            e(stv(0, i, vS[0]))
            for x in rest[i * q4:(i + 1) * q4 if i < 3 else None]: e(x)
        for x in pack(7, vK + 28): e(x)
        for x in rd(vS[1]): e(x)
        for i in range(4):
            e(f"s_waitcnt lgkmcnt({3-i})"); e(stv(1, i, vS[1]))
    g.stamp()
    if opt.drainstamp: e("s_waitcnt vmcnt(0)"); g.stamp()
    e(f"s_lshl_b32 s{sT2}, s{sWID}, 2")
    e(f"s_add_u32 s{sT2}, s{sT2}, {FLAG_OFF}")
    e(f"v_mov_b32 v{t0}, s{sT2}")
    e(f"v_mov_b32 v{t1}, s{sFLAG}")
    e(f"ds_write_b32 v{t0}, v{t1}")
    e("s_waitcnt lgkmcnt(0)")
    e("s_barrier")
    e(f"v_and_b32 v{t0}, 7, v{vLANE}")
    e(f"v_lshlrev_b32 v{t0}, 2, v{t0}")
    e(f"v_add_u32 v{t0}, {FLAG_OFF}, v{t0}")
    e(f"ds_read_b32 v{t1}, v{t0}")
    e("s_waitcnt lgkmcnt(0)")
    e(f"v_cmp_ne_u32 vcc, 0, v{t1}")
    e(f"s_cmp_lg_u32 s{sREDO}, 0")
    e("s_cbranch_scc1 L_fin")
    e("s_cbranch_vccnz L_redo")
    g.lab("L_fin")
    if opt.stamps:
        e("s_waitcnt vmcnt(0)")
        g.stamp()
        e("s_memrealtime s[48:49]")
        e("s_waitcnt lgkmcnt(0)")
        e(f"s_lshl_b32 s36, s2, 3"); e(f"s_add_u32 s36, s36, s{sWID}"); e("s_lshl_b32 s36, s36, 7")
        e("v_mov_b32 v4, s36")
        e(f"v_cmp_eq_u32 vcc, 0, v{vLANE}"); e("s_and_saveexec_b64 s[42:43], vcc")
        e("v_mov_b32 v6, s46"); e("global_store_dword v4, v6, s[44:45] offset:0")
        e("v_mov_b32 v6, s48"); e("global_store_dword v4, v6, s[44:45] offset:4")
        for i in range(1, g.nstamp):
            if opt.both:
                e(f"s_sub_u32 s36, s{50+4*i}, s50"); e("v_mov_b32 v6, s36"); e(f"global_store_dword v4, v6, s[44:45] offset:{4+4*i}")
                e(f"s_sub_u32 s36, s{52+4*i}, s52"); e("v_mov_b32 v6, s36"); e(f"global_store_dword v4, v6, s[44:45] offset:{64+4*i}")
            else:
                e(f"s_sub_u32 s36, s{50+2*i}, s50"); e("v_mov_b32 v6, s36"); e(f"global_store_dword v4, v6, s[44:45] offset:{4+4*i}")
        e("s_waitcnt vmcnt(0)")
    g.lab("L_end")
    e("s_endpgm")
    g.lab("L_redo")
    e("s_barrier")
    e(f"s_mov_b32 s{sREDO}, 1")
    e(f"v_and_b32 v{t0}, 15, v{vLANE}"); e(f"v_lshrrev_b32 v{t1}, 4, v{vLANE}")
    e(f"v_lshlrev_b32 v{t0}, 8, v{t0}"); e(f"v_lshl_add_u32 v{t0}, v{t1}, 4, v{t0}")
    e(f"v_add_u32 v{t2}, 4096, v{t0}")
    e(f"v_mov_b32 v{vNM}, 0xff800000"); e(f"v_mov_b32 v{vNM+4}, 0xff800000")
    e(f"s_mov_b32 s{sT2}, s{sKVOFF}")
    e(f"s_add_u32 s43, s{sKVOFF}, 131072")
    g.lab("L_redo_loop")
    e("s_waitcnt vmcnt(0)")
    for f in range(8):
        e(f"buffer_load_dwordx4 v[{vK+4*f}:{vK+4*f+3}], v{t2 if f >= 4 else t0}, s[{sKSRD}:{sKSRD+3}], s{sT2} offen offset:{64*(f&3)}")
    e("s_waitcnt vmcnt(0)")
    for m in range(16): e(qk(0, m))
    e("s_nop 15")
    for qb in range(2):
        for i in range(0, 8, 2): e(f"v_max3_f32 v{vNM+4*qb}, v{vNM+4*qb}, v{S0+8*qb+i}, v{S0+8*qb+i+1}")
    e(f"s_add_u32 s{sT2}, s{sT2}, 8192")
    e(f"s_cmp_lt_u32 s{sT2}, s43")
    e("s_cbranch_scc1 L_redo_loop")
    xlane([vNM, vNM + 4], [t0, t1])
    e(f"v_sub_f32 v{vNM}, 0, v{vNM}"); e(f"v_sub_f32 v{vNM+4}, 0, v{vNM+4}")
    e("s_branch L_restart")
    if "CP" in when: g.L.append(".fill 1024, 4, 0xbf800000")
    g.L.append('.section .rodata,"a"'); g.L.append(".p2align 6"); g.L.append(f".amdhsa_kernel {KNAME}")
    for l in [f".amdhsa_next_free_vgpr {NV}", ".amdhsa_next_free_sgpr 102", f".amdhsa_accum_offset {NV}", ".amdhsa_group_segment_fixed_size 0",
              ".amdhsa_kernarg_size 48", ".amdhsa_user_sgpr_count 2", ".amdhsa_user_sgpr_kernarg_segment_ptr 1", ".amdhsa_system_sgpr_workgroup_id_x 1"]:
        g.L.append("  " + l)
    g.L.append(".end_amdhsa_kernel")
    g.L.append(f"; nstamp={g.nstamp}")
    return "\n".join(g.L) + "\n"

if __name__ == "__main__":
    ap = argparse.ArgumentParser()
    ap.add_argument("-o", default="standalone__gqa_softmax__near_ridge.s")
    ap.add_argument("--schedB", default="-1:K1,V0,CP_0:K2,V1,TQ_1:Qa,Qb_2:K3,V2")
    ap.add_argument("--schedA", default="3:K4,V3_4:K5,V4_5:K6,V5_6:K7,V6_7:V7")
    ap.add_argument("--dblk", type=int, default=4)
    ap.add_argument("--dstart", type=int, default=0)
    ap.add_argument("--prio0", action="store_true")
    ap.add_argument("--codepf", action="store_true")
    ap.add_argument("--dry", action="store_true")
    ap.add_argument("--bearly", action="store_true")
    ap.add_argument("--ns", type=int, default=2)
    ap.add_argument("--earlyq", type=int, default=0)
    ap.add_argument("--tight", type=int, default=0)
    ap.add_argument("--mscale", action="store_true")
    ap.add_argument("--pkmul", action="store_true")
    ap.add_argument("--sparse", action="store_true")
    ap.add_argument("--prioA", action="store_true")
    ap.add_argument("--prioslot", type=int, default=0)
    ap.add_argument("--ring", type=int, default=5)
    ap.add_argument("--epiprio", type=int, default=0)
    ap.add_argument("--qtail", action="store_true")
    ap.add_argument("--qfill", type=int, default=3)
    ap.add_argument("--tail2", action="store_true")
    ap.add_argument("--pfh", type=int, default=0)
    ap.add_argument("--stag", type=int, default=0)
    ap.add_argument("--vg", action="store_true")
    ap.add_argument("--arr2", action="store_true")
    ap.add_argument("--spread", type=int, default=1)
    ap.add_argument("--stamps", action="store_true")
    ap.add_argument("--rt", action="store_true")
    ap.add_argument("--both", action="store_true")
    ap.add_argument("--drainstamp", action="store_true")
    ap.add_argument("--ldflag", default="")
    ap.add_argument("--qflag", default="")
    ap.add_argument("--stflag", default="sc0 sc1 nt")
    opt = ap.parse_args()
    open(opt.o, "w").write(build(opt))
```
